```python
import torch

def _softmax(x, axis=-1):
    return torch.softmax(x, dim=axis)

def _gelu(x):
    return torch.nn.functional.gelu(x, approximate='tanh')

def _silu(x):
    return torch.nn.functional.silu(x)

def _sigmoid(x):
    return torch.sigmoid(x)

def _layernorm(x, axis=-1, eps=1e-05):
    m = x.mean(dim=axis, keepdim=True)
    v = x.var(dim=axis, keepdim=True, unbiased=False)
    return (x - m) / torch.sqrt(v + eps)

def _scatter_add(tgt, idx, src, axis=0):
    return tgt.clone().index_add_(axis, idx, src)

def _segment_sum(src, seg, n):
    out = torch.zeros((n,) + src.shape[1:], dtype=src.dtype)
    return out.index_add_(0, seg, src)

def _pad(x, pw):
    flat = tuple((v for pair in reversed(pw) for v in pair))
    return torch.nn.functional.pad(x, flat)
kernel_name = 'standalone__autoregressive_conv_wavenet__speech'

def setup_inputs():

    _w = lambda a: (lambda t: t.to(torch.bfloat16) if t.is_floating_point() else t)(torch.as_tensor(a))
    B, T, D, K = (2, 4000, 144, 31)
    return {'x': _w((lambda *s: torch.randn(*s, dtype=torch.bfloat16) * 0.1)(B, T, D)), 'w': _w((lambda *s: torch.randn(*s, dtype=torch.bfloat16) * 0.1)(K, D, 2 * D)), 'w_o': _w((lambda *s: torch.randn(*s, dtype=torch.bfloat16) * 0.05)(D, D))}

def reference(x, w, w_o):
    B, T, D = x.shape
    K = w.shape[0]
    dil = 2
    pad = (K - 1) * dil
    xp = _pad(x, ((0, 0), (pad, 0), (0, 0)))
    h = torch.einsum('btc,cd->btd', xp[:, pad:pad + T, :], w[0])
    for i in range(1, K):
        off = pad - i * dil
        h = h + torch.einsum('btc,cd->btd', xp[:, off:off + T, :], w[i])
    f = h[..., :D].clone()
    g = h[..., D:].clone()
    z = torch.tanh(f) * _sigmoid(g)
    return z @ w_o
```

```python
class Asm:
    def __init__(self):
        self.lines = []
        self.vm = []
        self.lg = []

    def raw(self, s):
        self.lines.append(s)

    def i(self, s):
        self.lines.append("    " + s)

    def label(self, s):
        self.lines.append(s + ":")

    def c(self, s):
        self.lines.append("    ; " + s)

    def vmem(self, s, tag=None):
        self.i(s)
        self.vm.append(tag)

    def wait_vm(self, tags):
        if not isinstance(tags, (list, set)):
            tags = [tags]
        last = -1
        for k, t in enumerate(self.vm):
            if t in tags:
                last = k
        if last < 0:
            return None
        n = len(self.vm) - 1 - last
        self.vm = self.vm[last + 1:]
        s = f"s_waitcnt vmcnt({min(n, 63)})"
        assert n <= 63
        return s

    def wait_vm_emit(self, tags):
        s = self.wait_vm(tags)
        if s:
            self.i(s)

    def vm_all(self):
        self.vm = []
        self.i("s_waitcnt vmcnt(0)")

    def lds(self, s, tag=None):
        self.i(s)
        self.lg.append(tag)

    def wait_lg(self, tags):
        if not isinstance(tags, (list, set)):
            tags = [tags]
        last = -1
        for k, t in enumerate(self.lg):
            if t in tags:
                last = k
        if last < 0:
            return None
        n = len(self.lg) - 1 - last
        self.lg = self.lg[last + 1:]
        assert n <= 15 or True
        return f"s_waitcnt lgkmcnt({min(n, 15)})" if n <= 15 else None

    def wait_lg_emit(self, tags):
        if not isinstance(tags, (list, set)):
            tags = [tags]
        last = -1
        for k, t in enumerate(self.lg):
            if t in tags:
                last = k
        if last < 0:
            return
        n = len(self.lg) - 1 - last
        if n > 15:
            n = 15
            last = len(self.lg) - 1 - 15
        self.lg = self.lg[last + 1:]
        self.i(f"s_waitcnt lgkmcnt({n})")

    def lg_all(self):
        self.lg = []
        self.i("s_waitcnt lgkmcnt(0)")

    def text(self):
        return "\n".join(self.lines) + "\n"


def vr(a, n=4):
    return f"v[{a}:{a+n-1}]"


def ar(a, n=4):
    return f"a[{a}:{a+n-1}]"


def kd(name, vgpr, accum, sgpr=102):
    return f""".p2align 6
.amdhsa_kernel {name}
  .amdhsa_next_free_vgpr {vgpr}
  .amdhsa_next_free_sgpr {sgpr}
  .amdhsa_accum_offset {accum}
  .amdhsa_group_segment_fixed_size 0
  .amdhsa_kernarg_size 48
  .amdhsa_user_sgpr_count 2
  .amdhsa_user_sgpr_kernarg_segment_ptr 1
  .amdhsa_system_sgpr_workgroup_id_x 1
.end_amdhsa_kernel
"""
```

```python
import sys
from asmlib import Asm, vr, ar, kd

KNAME = "standalone__autoregressive_conv_wavenet__speech_kernel"

XROWS = 159
XB = XROWS * 288
L_X0, L_X1, L_XS = 0, XB, 2 * XB
L_RING = 3 * XB
RSLOTS = 6
LDS_MAIN = L_RING + 4 * RSLOTS * 1024
TAPB = 82944
W_BYTES = 31 * TAPB
H_OFF = 0x100000
H_TEAM = 9 * 9 * 2048

S_X, S_W, S_WO, S_OUT, S_WS = 16, 20, 24, 28, 32
sT, sJ, sTAU, sSEQ, sPAR, sB, sWAVE, sCH, sKH, sN0, sRING, sMASK = 36, 37, 38, 39, 40, 41, 42, 43, 44, 45, 46, 47
sI = 48
sT0, sT1, sT2, sT3 = 50, 51, 52, 53
sSOFF = 54

vLANE, vR, vG = 1, 2, 3
vXB = {"0": 10, "1": 11, "s": 12}
vPB = {"0": 13, "1": 14, "s": 15}
vWD, vWP, vTR, vXA, vXW, vXD = 16, 17, 18, 19, 20, 21
vS = 24
vH0 = (28, 32)
vH1 = (36, 40)
vHS = (44, 48)
vHT = 52
vAD = (68, 72)
vAB = (76, 80)
vAC = (84, 86)
vXA2, vXW2, vXA3, vXW3 = 88, 89, 90, 91
ACC = {"P": 148, "Q": 184, "R": 220}


def srd(a, s, base, nbytes):
    a.i(f"s_mov_b32 s{s}, s{base}")
    a.i(f"s_and_b32 s{s+1}, s{base+1}, 0xffff")
    a.i(f"s_mov_b32 s{s+2}, {nbytes}")
    a.i(f"s_mov_b32 s{s+3}, 0x20000")


def decode_wg(a, exit_label):
    a.i(f"s_cmp_ge_u32 s2, 256")
    a.i(f"s_cbranch_scc1 {exit_label}")
    a.i(f"s_and_b32 s{sT0}, s2, 7")
    a.i(f"s_lshl_b32 s{sT0}, s{sT0}, 5")
    a.i(f"s_lshr_b32 s{sT1}, s2, 3")
    a.i(f"s_add_u32 s{sI}, s{sT0}, s{sT1}")
    a.i(f"s_cmp_ge_u32 s{sI}, 252")
    a.i(f"s_cbranch_scc1 {exit_label}")
    a.i(f"s_load_dwordx4 s[4:7], s[0:1], 0")
    a.i(f"s_load_dwordx4 s[8:11], s[0:1], 16")
    a.i(f"s_load_dwordx4 s[12:15], s[0:1], 32")
    a.i(f"s_mul_i32 s{sT}, s{sI}, 7282")
    a.i(f"s_lshr_b32 s{sT}, s{sT}, 16")
    a.i(f"s_mul_i32 s{sT0}, s{sT}, 9")
    a.i(f"s_sub_u32 s{sJ}, s{sI}, s{sT0}")
    a.i(f"s_mul_i32 s{sSEQ}, s{sT}, 9363")
    a.i(f"s_lshr_b32 s{sSEQ}, s{sSEQ}, 16")
    a.i(f"s_mul_i32 s{sT0}, s{sSEQ}, 7")
    a.i(f"s_sub_u32 s{sTAU}, s{sT}, s{sT0}")
    a.i(f"s_and_b32 s{sPAR}, s{sSEQ}, 1")
    a.i(f"s_lshr_b32 s{sB}, s{sSEQ}, 1")
    a.i(f"s_mul_i32 s{sN0}, s{sTAU}, 143")
    a.i(f"s_sub_u32 s{sN0}, s{sN0}, 1")
    a.i(f"v_lshrrev_b32 v4, 6, v0")
    a.i(f"v_and_b32 v{vLANE}, 63, v0")
    a.i(f"v_readfirstlane_b32 s{sWAVE}, v4")
    a.i(f"v_and_b32 v{vR}, 15, v{vLANE}")
    a.i(f"v_lshrrev_b32 v{vG}, 4, v{vLANE}")
    a.i(f"s_and_b32 s{sCH}, s{sWAVE}, 1")
    a.i(f"s_lshr_b32 s{sKH}, s{sWAVE}, 1")
    a.i(f"s_mul_i32 s{sT0}, s{sB}, 1152000")
    a.i("s_waitcnt lgkmcnt(0)")
    a.i(f"s_add_u32 s{S_X}, s4, s{sT0}")
    a.i(f"s_addc_u32 s{S_X+1}, s5, 0")
    a.i(f"s_and_b32 s{S_X+1}, s{S_X+1}, 0xffff")
    a.i(f"s_mov_b32 s{S_X+2}, 1152000")
    a.i(f"s_mov_b32 s{S_X+3}, 0x20000")
    srd(a, S_W, 6, W_BYTES)
    srd(a, S_WO, 8, 41472)
    a.i(f"s_add_u32 s{S_OUT}, s10, s{sT0}")
    a.i(f"s_addc_u32 s{S_OUT+1}, s11, 0")
    a.i(f"s_and_b32 s{S_OUT+1}, s{S_OUT+1}, 0xffff")
    a.i(f"s_mov_b32 s{S_OUT+2}, 1152000")
    a.i(f"s_mov_b32 s{S_OUT+3}, 0x20000")
    srd(a, S_WS, 14, 0x10000000)


class Step:
    def __init__(self, seg, j):
        self.seg, self.j = seg, j
        self.hasQ = not (seg in "AB" and j == 15)
        self.items = []
        if seg in ("A", "B"):
            so = 18432 if seg == "B" else 0
            self.items.append(("H0", 2 * j * TAPB + so, vWD))
            if self.hasQ:
                self.items.append(("H1", (2 * j + 1) * TAPB + so, vWD))
            self.shift = j
        else:
            self.items.append(("H0", 4 * j * TAPB, vWP))
            self.items.append(("H1", (4 * j + 1) * TAPB, vWP))
            self.shift = 2 * j

    def xkeys(self):
        ks = []
        for seq in ("0", "1", "s"):
            if seq == "1" and not self.hasQ:
                continue
            for m in range(9):
                ks.append((seq, self.seg, m - self.shift))
        return ks


STEPS = [Step("A", j) for j in range(16)] + [Step("B", j) for j in range(16)] + [Step("Pr", j) for j in range(4)]


def x_addr(key):
    seq, seg, q = key
    if seg == "Pr":
        return vPB[seq], (q + 15) * 288
    return vXB[seq], (q + 15) * 288 + (64 if seg == "B" else 0)


class XWin:
    def __init__(self):
        self.pool = {"0": list(range(0, 21)), "1": list(range(21, 42)), "s": list(range(42, 63))}
        self.slot = {}
        self.last = {}
        for si, st in enumerate(STEPS):
            for k in st.xkeys():
                self.last[k] = si

    def alloc(self, key):
        s = self.pool[key[0]].pop(0)
        self.slot[key] = s
        return s * 4

    def reg(self, key):
        return self.slot[key] * 4

    def release_after(self, si):
        for k, s in list(self.slot.items()):
            if self.last[k] == si:
                self.pool[k[0]].append(s)
                del self.slot[k]


def hs_valu(h0, h1, hs):
    st = []
    for stage in range(7):
        for d in range(4):
            t = vHT + 4 * d
            st.append([f"v_lshlrev_b32 v{t}, 16, v{h0+d}", f"v_lshlrev_b32 v{t+1}, 16, v{h1+d}",
                       f"v_and_b32 v{t+2}, s{sMASK}, v{h0+d}", f"v_and_b32 v{t+3}, s{sMASK}, v{h1+d}",
                       f"v_add_f32 v{t}, v{t}, v{t+1}", f"v_add_f32 v{t+2}, v{t+2}, v{t+3}",
                       f"v_cvt_pk_bf16_f32 v{hs+d}, v{t}, v{t+2}"][stage])
    return st


def gen_main(a, store_h=True):
    a.label(KNAME)
    decode_wg(a, "L_end")
    a.i(f"s_mov_b32 s{sMASK}, 0xffff0000")
    a.i(f"s_mul_i32 s{sRING}, s{sWAVE}, {RSLOTS*1024}")
    a.i(f"s_add_u32 s{sRING}, s{sRING}, {L_RING}")
    a.i(f"s_mul_i32 s{sT0}, s{sI}, 80")
    a.i(f"s_mul_i32 s{sT1}, s{sWAVE}, 20")
    a.i(f"s_add_u32 s{sT0}, s{sT0}, s{sT1}")
    a.i(f"v_min_u32 v4, 19, v{vLANE}")
    a.i(f"v_add_u32 v4, s{sT0}, v4")
    a.i(f"v_lshlrev_b32 v4, 7, v4")
    a.vmem(f"buffer_load_dword v22, v4, s[{S_W}:{S_W+3}], 0 offen", "pf")
    a.i(f"v_mul_u32_u24 v4, 3641, v{vLANE}")
    a.i(f"v_lshrrev_b32 v4, 16, v4")
    a.i(f"v_mul_u32_u24 v6, 18, v4")
    a.i(f"v_sub_u32 v6, v{vLANE}, v6")
    a.i(f"v_mul_u32_u24 v4, 1152, v4")
    a.i(f"v_lshlrev_b32 v6, 4, v6")
    a.i(f"v_add_u32 v4, v4, v6")
    a.i(f"s_sub_u32 s{sT0}, s{sN0}, 15")
    a.i(f"s_mul_i32 s{sT0}, s{sT0}, 1152")
    a.i(f"s_mul_i32 s{sT1}, s{sPAR}, 288")
    a.i(f"s_add_u32 s{sT0}, s{sT0}, s{sT1}")
    a.i(f"v_add_u32 v7, s{sT0}, v4")
    a.i(f"s_mul_i32 s{sT1}, s{sWAVE}, {3*1152}")
    a.i(f"v_add_u32 v{vXD}, s{sT1}, v7")
    a.i(f"v_add_u32 v8, 576, v{vXD}")
    a.i(f"v_add_u32 v9, {156*1152}, v7")
    a.i(f"v_add_u32 v7, {156*1152+576}, v7")
    a.i(f"s_mul_i32 s{sT2}, s{sWAVE}, 864")
    a.i("s_mov_b32 exec_lo, -1")
    a.i("s_mov_b32 exec_hi, 0x3fffff")
    for i in range(14):
        for sel in range(2):
            base = L_X1 if sel else L_X0
            if i < 13:
                a.i(f"s_add_u32 m0, s{sT2}, {base + 3456*i}")
                reg = 8 if sel else vXD
                a.i(f"v_add_u32 v{reg}, 13824, v{reg}" if i else "s_nop 0")
                a.vmem(f"buffer_load_dwordx4 v{reg}, s[{S_X}:{S_X+3}], 0 offen lds", "x")
            else:
                a.i(f"s_mov_b32 m0, {base + 156*288}")
                a.i("s_nop 0")
                a.vmem(f"buffer_load_dwordx4 v{7 if sel else 9}, s[{S_X}:{S_X+3}], 0 offen lds", "x")
    a.i("s_mov_b64 exec, -1")
    a.i(f"v_lshrrev_b32 v4, 3, v{vLANE}")
    a.i(f"v_lshrrev_b32 v5, 2, v4")
    a.i(f"v_lshlrev_b32 v5, 4, v5")
    a.i(f"v_and_b32 v6, 1, v4")
    a.i(f"v_lshlrev_b32 v6, 3, v6")
    a.i(f"v_add_u32 v5, v5, v6")
    a.i(f"v_and_b32 v6, 2, v4")
    a.i(f"v_lshlrev_b32 v6, 1, v6")
    a.i(f"v_add_u32 v5, v5, v6")
    a.i(f"v_bfe_u32 v6, v{vLANE}, 1, 2")
    a.i(f"v_add_u32 v5, v5, v6")
    a.i(f"v_and_b32 v6, 1, v{vLANE}")
    a.i(f"v_lshlrev_b32 v6, 4, v6")
    a.i(f"s_lshl_b32 s{sT0}, s{sJ}, 6")
    a.i(f"s_lshl_b32 s{sT1}, s{sCH}, 5")
    a.i(f"s_add_u32 s{sT0}, s{sT0}, s{sT1}")
    a.i(f"v_add_u32 v6, s{sT0}, v6")
    a.i(f"v_mul_u32_u24 v7, 576, v5")
    a.i(f"v_add_u32 v7, v7, v6")
    a.i(f"s_mul_i32 s{sT1}, s{sKH}, 36864")
    a.i(f"v_add_u32 v{vWD}, s{sT1}, v7")
    a.i(f"v_and_b32 v7, 15, v5")
    a.i(f"v_mul_u32_u24 v7, 576, v7")
    a.i(f"v_lshrrev_b32 v8, 4, v5")
    a.i(f"v_mul_u32_u24 v8, {2*TAPB}, v8")
    a.i(f"v_add_u32 v7, v7, v8")
    a.i(f"v_add_u32 v7, v7, v6")
    a.i(f"s_mul_i32 s{sT1}, s{sKH}, {16*TAPB}")
    a.i(f"s_add_u32 s{sT1}, s{sT1}, {128*576}")
    a.i(f"v_add_u32 v{vWP}, s{sT1}, v7")

    items = []
    for si, st in enumerate(STEPS):
        for it in st.items:
            items.append((si,) + it)
    slot_of = {(si, nm): k % RSLOTS for k, (si, nm, _, _) in enumerate(items)}

    def dma_instrs(si):
        out = []
        for nm, so, vreg in STEPS[si].items:
            sl = slot_of[(si, nm)]
            out.append(lambda sl=sl: a.i(f"s_add_u32 m0, s{sRING}, {sl*1024}"))
            out.append(lambda so=so: a.i(f"s_mov_b32 s{sSOFF}, {so}"))
            out.append(lambda vreg=vreg, si=si, nm=nm: a.vmem(
                f"buffer_load_dwordx4 v{vreg}, s[{S_W}:{S_W+3}], s{sSOFF} offen lds", ("w", si)))
        return out
    for si in range(3):
        for f in dma_instrs(si):
            f()
    a.i(f"s_lshl_b32 s{sT0}, s{sI}, 2")
    a.i(f"s_add_u32 s{sT0}, s{sT0}, s{sWAVE}")
    a.i(f"s_mul_i32 s{sT1}, s{sT0}, 203")
    a.i(f"s_lshr_b32 s{sT1}, s{sT1}, 16")
    a.i(f"s_mul_i32 s{sT1}, s{sT1}, 324")
    a.i(f"s_sub_u32 s{sT0}, s{sT0}, s{sT1}")
    a.i(f"s_lshl_b32 s{sT0}, s{sT0}, 7")
    a.i(f"v_mov_b32 v4, s{sT0}")
    a.vmem(f"buffer_load_dword v23, v4, s[{S_WO}:{S_WO+3}], 0 offen", "pf2")

    a.i(f"v_mul_u32_u24 v4, 2592, v{vR}")
    a.i(f"v_lshlrev_b32 v5, 4, v{vG}")
    a.i(f"v_add_u32 v5, v4, v5")
    a.i(f"s_lshl_b32 s{sT0}, s{sKH}, 7")
    a.i(f"v_add_u32 v{vXB['0']}, s{sT0}, v5")
    a.i(f"v_add_u32 v{vXB['1']}, {L_X1}, v{vXB['0']}")
    a.i(f"v_add_u32 v{vXB['s']}, {L_XS}, v{vXB['0']}")
    a.i(f"v_and_b32 v5, 1, v{vG}")
    a.i(f"v_lshlrev_b32 v5, 4, v5")
    a.i(f"v_add_u32 v5, v4, v5")
    a.i(f"v_lshrrev_b32 v6, 1, v{vG}")
    a.i(f"v_mul_u32_u24 v6, 288, v6")
    a.i(f"v_sub_u32 v5, v5, v6")
    a.i(f"s_mul_i32 s{sT0}, s{sKH}, {8*288}")
    a.i(f"s_sub_u32 s{sT0}, 256, s{sT0}")
    a.i(f"v_add_u32 v{vPB['0']}, s{sT0}, v5")
    a.i(f"v_add_u32 v{vPB['1']}, {L_X1}, v{vPB['0']}")
    a.i(f"v_add_u32 v{vPB['s']}, {L_XS}, v{vPB['0']}")
    a.i(f"v_lshrrev_b32 v4, 1, v{vG}")
    a.i(f"v_lshlrev_b32 v4, 9, v4")
    a.i(f"v_and_b32 v5, 1, v{vG}")
    a.i(f"v_lshlrev_b32 v5, 7, v5")
    a.i(f"v_add_u32 v4, v4, v5")
    a.i(f"v_lshrrev_b32 v5, 2, v{vR}")
    a.i(f"v_lshlrev_b32 v5, 5, v5")
    a.i(f"v_add_u32 v4, v4, v5")
    a.i(f"v_and_b32 v5, 3, v{vR}")
    a.i(f"v_lshlrev_b32 v5, 3, v5")
    a.i(f"v_add_u32 v4, v4, v5")
    a.i(f"v_add_u32 v{vTR}, s{sRING}, v4")
    a.i(f"v_mul_u32_u24 v4, 288, v{vR}")
    a.i(f"v_lshrrev_b32 v5, 1, v{vG}")
    a.i(f"v_mul_u32_u24 v5, {XB}, v5")
    a.i(f"v_and_b32 v6, 1, v{vG}")
    a.i(f"v_lshlrev_b32 v6, 4, v6")
    a.i(f"v_add3_u32 v5, v4, v5, v6")
    a.i(f"v_lshlrev_b32 v6, 3, v{vG}")
    a.i(f"v_add_u32 v6, v4, v6")
    a.i(f"v_add_u32 v6, {L_XS}, v6")
    a.i(f"s_lshl_b32 s{sT0}, s{sKH}, 7")
    a.i(f"s_lshl_b32 s{sT1}, s{sCH}, 5")
    a.i(f"s_add_u32 s{sT0}, s{sT0}, s{sT1}")
    a.i(f"v_add_u32 v{vXA}, s{sT0}, v5")
    a.i(f"v_add_u32 v{vXW}, s{sT0}, v6")
    a.i(f"s_mul_i32 s{sT0}, s{sWAVE}, {16*288}")
    a.i(f"s_add_u32 s{sT0}, s{sT0}, 256")
    a.i(f"v_add_u32 v{vXA2}, s{sT0}, v5")
    a.i(f"v_add_u32 v{vXW2}, s{sT0}, v6")
    a.i(f"s_lshl_b32 s{sT0}, s{sWAVE}, 4")
    a.i(f"s_add_u32 s{sT0}, s{sT0}, 128")
    a.i(f"s_min_u32 s{sT0}, s{sT0}, 143")
    a.i(f"s_mul_i32 s{sT0}, s{sT0}, 288")
    a.i(f"s_add_u32 s{sT0}, s{sT0}, 256")
    a.i(f"v_add_u32 v{vXA3}, s{sT0}, v5")
    a.i(f"v_add_u32 v{vXW3}, s{sT0}, v6")
    a.i(f"v_lshrrev_b32 v4, 3, v{vR}")
    a.i(f"v_and_b32 v5, 1, v{vG}")
    a.i(f"v_cmp_eq_u32 vcc, v4, v5")
    a.i(f"v_and_b32 v4, 1, v{vR}")
    a.i(f"v_lshlrev_b32 v4, 4, v4")
    a.i(f"v_mov_b32 v5, 0x3f80")
    a.i(f"v_lshlrev_b32 v4, v4, v5")
    a.i(f"v_cndmask_b32 v4, 0, v4, vcc")
    a.i(f"v_bfe_u32 v5, v{vR}, 1, 2")
    for d in range(4):
        a.i(f"v_cmp_eq_u32 vcc, {d}, v5")
        a.i("s_nop 1")
        a.i(f"v_cndmask_b32 v{vS+d}, 0, v4, vcc")

    def blocks(seg):
        if seg in ("A", "B"):
            so = 64 if seg == "B" else 0
            return [(vXA, vXW, min(16 * rb, 143) * 288 + so) for rb in range(10)]
        return [(vXA2, vXW2, 0), (vXA2, vXW2, 64 * 288), (vXA3, vXW3, 0)]

    def ad_read(bi, blk):
        ra, _, imm = blk
        return lambda: a.lds(f"ds_read_b128 {vr(vAB[bi % 2])}, v{ra} offset:{imm}", ("ab", bi % 2))

    def ad_mfma(bi):
        def f():
            a.wait_lg_emit(("ab", bi % 2))
            a.i(f"v_mfma_f32_16x16x32_bf16 {vr(vAD[bi % 2])}, {vr(vS)}, {vr(vAB[bi % 2])}, 0")
        return f

    def ad_fin(bi, blk):
        _, wa, imm = blk
        d, c = vAD[bi % 2], vAC[bi % 2]
        return [lambda: a.i(f"v_cvt_pk_bf16_f32 v{c}, v{d}, v{d+1}"),
                lambda: a.i(f"v_cvt_pk_bf16_f32 v{c+1}, v{d+2}, v{d+3}"),
                lambda: a.lds(f"ds_write_b64 v{wa}, v[{c}:{c+1}] offset:{imm}", "xw")]

    a.wait_vm_emit("x")
    a.i("s_barrier")
    bl = blocks("A")
    ad_read(0, bl[0])()
    ad_read(1, bl[1])()
    for bi in range(10):
        ad_mfma(bi)()
        a.i("s_nop 7")
        for f in ad_fin(bi, bl[bi]):
            f()
        if bi + 2 < 10:
            ad_read(bi + 2, bl[bi + 2])()
    xw = XWin()

    def x_read(key):
        def f():
            reg, imm = x_addr(key)
            d = xw.alloc(key)
            a.lds(f"ds_read_b128 {ar(d)}, v{reg} offset:{imm}", ("x", key))
        return f

    def tr_reads(si):
        out = []
        b = si % 2
        for nm, _, _ in STEPS[si].items:
            sl = slot_of[(si, nm)]
            d = (vH0 if nm == "H0" else vH1)[b]
            for h in range(2):
                out.append(lambda d=d, h=h, sl=sl, si=si: a.lds(
                    f"ds_read_b64_tr_b16 v[{d+2*h}:{d+2*h+1}], v{vTR} offset:{sl*1024 + h*256}", ("tr", si)))
        return out

    def hs_ops(si):
        if not STEPS[si].hasQ:
            return []
        b = si % 2
        return [lambda s=s: a.i(s) for s in hs_valu(vH0[b], vH1[b], vHS[b])]

    first = STEPS[0].xkeys()
    for k in first:
        if k[0] != "s":
            x_read(k)()
    a.wait_vm_emit(("w", 0))
    for f in tr_reads(0):
        f()
    a.wait_lg_emit(("tr", 0))
    for f in hs_ops(0):
        f()
    a.lg_all()
    a.i("s_barrier")
    for k in first:
        if k[0] == "s":
            x_read(k)()
    loaded = set(first)

    extra = {si: [] for si in range(len(STEPS))}
    for (s0, nxt) in ((0, 16), (16, 32)):
        ks = STEPS[nxt].xkeys()
        raw = [k for k in ks if k[0] != "s"]
        sm = [k for k in ks if k[0] == "s"]
        for n, k in enumerate(raw):
            extra[s0 + 6 + n // 2].append(k)
        for n, k in enumerate(sm):
            extra[s0 + 7 + n].append(k)
    adjobs = {}
    for s0, seg in ((0, "B"), (16, "Pr")):
        bl = blocks(seg)
        for bi, blk in enumerate(bl):
            adjobs.setdefault(s0 + bi // 2, []).append((bi, blk))
    barrier_at = {6, 22}

    nst = len(STEPS)
    for si, st in enumerate(STEPS):
        b = si % 2
        mf = []
        for grp, seq, wreg in (("P", "0", vH0[b]), ("Q", "1", vH1[b]), ("R", "s", vHS[b] if st.hasQ else vH0[b])):
            if grp == "Q" and not st.hasQ:
                continue
            for m in range(9):
                key = (seq, st.seg, m - st.shift)
                acc = ACC[grp] + 4 * m
                c = "0" if si == 0 else vr(acc)
                mf.append((key, f"v_mfma_f32_16x16x32_bf16 {vr(acc)}, {vr(wreg)}, {{X}}, {c}"))
        fl = []
        nx = si + 1
        if si in barrier_at:
            fl.append(lambda: a.lg_all())
            fl.append(lambda: a.i("s_barrier"))
        if nx < nst:
            fl.append(lambda nx=nx: a.wait_vm_emit(("w", nx)))
            fl += tr_reads(nx)
            for k in STEPS[nx].xkeys():
                if k not in loaded and k not in [e for ee in extra.values() for e in ee]:
                    loaded.add(k)
                    fl.append(x_read(k))
        for k in extra[si]:
            if k not in loaded:
                loaded.add(k)
                fl.append(x_read(k))
        prev = adjobs.get(si - 1, [])
        cur = adjobs.get(si, [])
        if si + 3 < nst:
            fl += dma_instrs(si + 3)
        mid = []
        for bi, blk in prev:
            mid.append(ad_mfma(bi))
        if nx < nst:
            hv = hs_ops(nx)
            if hv:
                fl.append(lambda nx=nx: a.wait_lg_emit(("tr", nx)))
        else:
            hv = []
        fl += mid
        fl += hv[:12]
        for bi, blk in prev:
            fl += ad_fin(bi, blk)
        for bi, blk in cur:
            fl.append(ad_read(bi, blk))
        fl += hv[12:]
        need = [("x", k) for k in st.xkeys()] + [("tr", si)]
        a.wait_lg_emit(need)
        n, k = len(mf), len(fl)
        j = 0
        for g, (key, s) in enumerate(mf):
            a.i(s.replace("{X}", ar(xw.reg(key))))
            want = min(k, -(-((g + 1) * k) // n)) if k > 2 * n else min(k, 2 * (g + 1))
            while j < want:
                fl[j]()
                j += 1
        while j < k:
            fl[j]()
            j += 1
        xw.release_after(si)

    if store_h:
        gen_h_store(a)
    a.label("L_end")
    a.i("s_endpgm")


def gen_h_store(a):
    P, Q, R = ACC["P"], ACC["Q"], ACC["R"]
    a.c("combine: Y1 = R - P - Q ; Y0 = P + Q(n-1)")
    a.i("s_nop 7")
    for m in range(9):
        for d in range(4):
            a.i(f"v_sub_f32 v{R+4*m+d}, v{R+4*m+d}, v{P+4*m+d}")
    for m in range(9):
        for d in range(4):
            a.i(f"v_sub_f32 v{R+4*m+d}, v{R+4*m+d}, v{Q+4*m+d}")
    for m in range(1, 9):
        for d in range(4):
            a.i(f"v_add_f32 v{P+4*m+d}, v{P+4*m+d}, v{Q+4*(m-1)+d}")
    for d in range(4):
        a.i(f"v_add_f32_dpp v{P+d}, v{Q+32+d}, v{P+d} row_shr:1 row_mask:0xf bank_mask:0xf")
    a.lg_all()
    a.i("s_barrier")
    a.i(f"v_lshlrev_b32 v4, 4, v{vLANE}")
    a.i(f"s_mul_i32 s{sT0}, s{sWAVE}, 9216")
    a.i(f"v_add_u32 v5, s{sT0}, v4")
    a.i(f"s_xor_b32 s{sT1}, s{sWAVE}, 2")
    a.i(f"s_mul_i32 s{sT1}, s{sT1}, 9216")
    a.i(f"v_add_u32 v6, s{sT1}, v4")
    a.i(f"s_cmp_eq_u32 s{sKH}, 0")
    a.i("s_cbranch_scc0 L_red1")
    for m in range(9):
        a.i(f"ds_write_b128 v5, {vr(R+4*m)} offset:{1024*m}")
    a.i("s_waitcnt lgkmcnt(0)")
    a.i("s_barrier")
    for m in range(9):
        a.i(f"ds_read_b128 {vr(Q+4*m)}, v6 offset:{1024*m}")
    a.i("s_waitcnt lgkmcnt(0)")
    for m in range(9):
        for d in range(4):
            a.i(f"v_add_f32 v{R+4*m+d}, v{P+4*m+d}, v{Q+4*m+d}")
    a.i("s_branch L_red2")
    a.label("L_red1")
    for m in range(9):
        a.i(f"ds_write_b128 v5, {vr(P+4*m)} offset:{1024*m}")
    a.i("s_waitcnt lgkmcnt(0)")
    a.i("s_barrier")
    for m in range(9):
        a.i(f"ds_read_b128 {vr(Q+4*m)}, v6 offset:{1024*m}")
    a.i("s_waitcnt lgkmcnt(0)")
    for m in range(9):
        for d in range(4):
            a.i(f"v_add_f32 v{R+4*m+d}, v{R+4*m+d}, v{Q+4*m+d}")
    a.label("L_red2")
    for m in range(9):
        a.i(f"v_cvt_pk_bf16_f32 v{P+2*m}, v{R+4*m}, v{R+4*m+1}")
        a.i(f"v_cvt_pk_bf16_f32 v{P+2*m+1}, v{R+4*m+2}, v{R+4*m+3}")
    a.i(f"v_mov_b32 v{P+18}, 0")
    a.i(f"v_mov_b32 v{P+19}, 0")
    a.i(f"s_mul_i32 s{sT0}, s{sT}, {H_TEAM}")
    a.i(f"s_lshl_b32 s{sT1}, s{sJ}, 11")
    a.i(f"s_add_u32 s{sT0}, s{sT0}, s{sT1}")
    a.i(f"s_lshl_b32 s{sT1}, s{sKH}, 10")
    a.i(f"s_add_u32 s{sT0}, s{sT0}, s{sT1}")
    a.i(f"s_lshl_b32 s{sT1}, s{sCH}, 9")
    a.i(f"s_add_u32 s{sT0}, s{sT0}, s{sT1}")
    a.i(f"s_add_u32 s{sT0}, s{sT0}, {H_OFF}")
    a.i(f"v_and_b32 v4, 1, v{vG}")
    a.i(f"v_mul_u32_u24 v5, 18432, v4")
    a.i(f"v_lshrrev_b32 v6, 1, v{vG}")
    a.i(f"v_lshlrev_b32 v6, 8, v6")
    a.i(f"v_lshlrev_b32 v7, 4, v{vR}")
    a.i(f"v_add3_u32 v5, v5, v6, v7")
    a.i(f"v_add_u32 v5, s{sT0}, v5")
    a.i(f"v_cmp_eq_u32 vcc, 1, v4")
    a.i(f"v_mov_b32 v6, 0x7fffffff")
    a.i("s_nop 0")
    a.i(f"v_cndmask_b32 v6, v5, v6, vcc")
    for m in range(0, 9, 2):
        r0 = P + 2 * m
        a.i(f"v_permlane16_swap_b32 v{r0}, v{r0+2}")
        a.i(f"v_permlane16_swap_b32 v{r0+1}, v{r0+3}")
    for m in range(0, 9, 2):
        r0 = P + 2 * m
        a.i(f"s_mov_b32 s{sT1}, {m*18432}")
        a.i(f"buffer_store_dwordx4 {vr(r0)}, v{6 if m == 8 else 5}, s[{S_WS}:{S_WS+3}], s{sT1} offen")
    a.i("s_waitcnt vmcnt(0)")


TAIL = "tail_kernel"
L_WO = 0
L_Z = 49152


def gen_tail_body(a):
    a.i(f"v_lshrrev_b32 v4, 3, v{vLANE}")
    a.i(f"v_lshrrev_b32 v5, 2, v4")
    a.i(f"v_lshlrev_b32 v5, 4, v5")
    a.i(f"v_and_b32 v6, 1, v4")
    a.i(f"v_lshlrev_b32 v6, 3, v6")
    a.i(f"v_add_u32 v5, v5, v6")
    a.i(f"v_and_b32 v6, 2, v4")
    a.i(f"v_lshlrev_b32 v6, 1, v6")
    a.i(f"v_add_u32 v5, v5, v6")
    a.i(f"v_bfe_u32 v6, v{vLANE}, 1, 2")
    a.i(f"v_add_u32 v5, v5, v6")
    a.i(f"v_mul_u32_u24 v5, 288, v5")
    a.i(f"v_and_b32 v6, 1, v{vLANE}")
    a.i(f"v_lshlrev_b32 v6, 4, v6")
    a.i(f"v_add_u32 v8, v5, v6")
    for i in range(12):
        a.i(f"s_add_u32 s{sT0}, s{sWAVE}, {4*i}")
        a.i(f"s_min_u32 s{sT0}, s{sT0}, 44")
        a.i(f"s_mul_i32 s{sT1}, s{sT0}, 13108")
        a.i(f"s_lshr_b32 s{sT1}, s{sT1}, 16")
        a.i(f"s_mul_i32 s{sT2}, s{sT1}, 5")
        a.i(f"s_sub_u32 s{sT2}, s{sT0}, s{sT2}")
        a.i(f"s_mul_i32 s{sT2}, s{sT2}, {32*288}")
        a.i(f"s_lshl_b32 s{sT1}, s{sT1}, 5")
        a.i(f"s_add_u32 s{sT1}, s{sT1}, s{sT2}")
        a.i(f"s_lshl_b32 s{sT0}, s{sT0}, 10")
        a.i(f"s_add_u32 m0, s{sT0}, {L_WO}")
        a.i("s_nop 0")
        a.vmem(f"buffer_load_dwordx4 v8, s[{S_WO}:{S_WO+3}], s{sT1} offen lds", "wo")
    a.i(f"s_mul_i32 s{sT0}, s{sT}, {H_TEAM}")
    a.i(f"s_mul_i32 s{sT1}, s{sJ}, 18432")
    a.i(f"s_add_u32 s{sT0}, s{sT0}, s{sT1}")
    a.i(f"s_lshl_b32 s{sT1}, s{sKH}, 10")
    a.i(f"s_add_u32 s{sT0}, s{sT0}, s{sT1}")
    a.i(f"s_lshl_b32 s{sT1}, s{sCH}, 12")
    a.i(f"s_add_u32 s{sT0}, s{sT0}, s{sT1}")
    a.i(f"s_add_u32 s{sT0}, s{sT0}, {H_OFF}")
    a.i(f"v_lshlrev_b32 v4, 8, v{vG}")
    a.i(f"v_lshlrev_b32 v5, 4, v{vR}")
    a.i(f"v_add_u32 v4, v4, v5")
    a.i(f"v_add_u32 v10, s{sT0}, v4")
    a.i(f"v_lshrrev_b32 v5, 1, v{vG}")
    a.i(f"v_lshlrev_b32 v5, 10, v5")
    a.i(f"v_add_u32 v11, v10, v5")
    a.i(f"v_add_u32 v11, {4*2048+512}, v11")
    F = (100, 108, 116)
    Gr = (104, 112, 120)
    for s in range(2):
        a.vmem(f"buffer_load_dwordx4 {vr(F[s])}, v10, s[{S_WS}:{S_WS+3}], 0 offen offset:{s*2048}", "h")
        a.vmem(f"buffer_load_dwordx4 {vr(Gr[s])}, v11, s[{S_WS}:{S_WS+3}], 0 offen offset:{s*2048}", "h")
    a.i(f"v_cmp_gt_u32 vcc, 2, v{vG}")
    a.i(f"s_cmp_eq_u32 s{sCH}, 0")
    a.i(f"s_cselect_b64 s[56:57], -1, 0")
    a.i(f"s_and_b64 vcc, vcc, s[56:57]")
    a.i(f"v_add_u32 v12, {4*2048}, v10")
    a.i(f"v_add_u32 v13, {4*2048}, v11")
    a.i(f"v_mov_b32 v14, 0x7fffffff")
    a.i(f"v_cndmask_b32 v12, v14, v12, vcc")
    a.i(f"v_cndmask_b32 v13, v14, v13, vcc")
    a.vmem(f"buffer_load_dwordx4 {vr(F[2])}, v12, s[{S_WS}:{S_WS+3}], 0 offen", "h")
    a.vmem(f"buffer_load_dwordx4 {vr(Gr[2])}, v13, s[{S_WS}:{S_WS+3}], 0 offen", "h")
    a.i("s_mov_b32 s58, 0xc038aa3b")
    a.i("s_mov_b32 s59, 0xbfb8aa3b")
    a.i("s_mov_b32 s60, 0x42700000")
    a.i(f"s_mov_b32 s{sMASK}, 0xffff0000")
    a.wait_vm_emit("h")
    Z = 124
    for s in range(3):
        for d in range(4):
            a.i(f"v_lshlrev_b32 v{40+2*d}, 16, v{F[s]+d}")
            a.i(f"v_and_b32 v{41+2*d}, s{sMASK}, v{F[s]+d}")
            a.i(f"v_lshlrev_b32 v{48+2*d}, 16, v{Gr[s]+d}")
            a.i(f"v_and_b32 v{49+2*d}, s{sMASK}, v{Gr[s]+d}")
        for e in range(8):
            a.i(f"v_mul_f32 v{40+e}, s58, v{40+e}")
        for e in range(8):
            a.i(f"v_mul_f32 v{48+e}, s59, v{48+e}")
        for e in range(8):
            a.i(f"v_min_f32 v{40+e}, s60, v{40+e}")
        for e in range(8):
            a.i(f"v_exp_f32 v{48+e}, v{48+e}")
        for e in range(8):
            a.i(f"v_exp_f32 v{40+e}, v{40+e}")
        for e in range(8):
            a.i(f"v_add_f32 v{56+e}, 1.0, v{40+e}")
        for e in range(8):
            a.i(f"v_fma_f32 v{56+e}, v{56+e}, v{48+e}, v{56+e}")
        for e in range(8):
            a.i(f"v_rcp_f32 v{56+e}, v{56+e}")
        for e in range(8):
            a.i(f"v_sub_f32 v{40+e}, 1.0, v{40+e}")
        for e in range(8):
            a.i(f"v_mul_f32 v{40+e}, v{40+e}, v{56+e}")
        for d in range(4):
            a.i(f"v_cvt_pk_bf16_f32 v{Z+4*s+d}, v{40+2*d}, v{41+2*d}")
    a.i(f"s_mul_i32 s{sT0}, s{sKH}, 5120")
    a.i(f"s_lshl_b32 s{sT1}, s{sCH}, 11")
    a.i(f"s_add_u32 s{sT0}, s{sT0}, s{sT1}")
    a.i(f"s_add_u32 s{sT0}, s{sT0}, {L_Z}")
    a.i(f"v_lshlrev_b32 v4, 4, v{vLANE}")
    a.i(f"v_add_u32 v5, s{sT0}, v4")
    a.i(f"ds_write_b128 v5, {vr(Z)}")
    a.i(f"ds_write_b128 v5, {vr(Z+4)} offset:1024")
    a.i(f"s_cmp_eq_u32 s{sCH}, 0")
    a.i("s_cbranch_scc0 L_noz4")
    a.i(f"ds_write_b128 v5, {vr(Z+8)} offset:4096")
    a.label("L_noz4")
    a.vm_all()
    a.lg_all()
    a.i("s_barrier")
    a.i(f"s_mul_i32 s{sT0}, s{sKH}, 5120")
    a.i(f"s_add_u32 s{sT0}, s{sT0}, {L_Z}")
    a.i(f"v_add_u32 v5, s{sT0}, v4")
    ZF = 60
    for ks in range(5):
        a.i(f"ds_read_b128 {vr(ZF+4*ks)}, v5 offset:{1024*ks}")
    a.i(f"v_lshrrev_b32 v6, 1, v{vG}")
    a.i(f"v_lshlrev_b32 v6, 9, v6")
    a.i(f"v_and_b32 v7, 1, v{vG}")
    a.i(f"v_lshlrev_b32 v7, 7, v7")
    a.i(f"v_add_u32 v6, v6, v7")
    a.i(f"v_lshrrev_b32 v7, 2, v{vR}")
    a.i(f"v_lshlrev_b32 v7, 5, v7")
    a.i(f"v_add_u32 v6, v6, v7")
    a.i(f"v_and_b32 v7, 3, v{vR}")
    a.i(f"v_lshlrev_b32 v7, 3, v7")
    a.i(f"v_add_u32 v6, v6, v7")
    a.i(f"s_mul_i32 s{sT0}, s{sCH}, {4*5*1024}")
    a.i(f"s_add_u32 s{sT0}, s{sT0}, {L_WO}")
    a.i(f"v_add_u32 v6, s{sT0}, v6")
    O = 140
    WF = 80
    for t in range(5):
        for ks in range(5):
            for h in range(2):
                a.i(f"ds_read_b64_tr_b16 v[{WF+4*ks+2*h}:{WF+4*ks+2*h+1}], v6 offset:{(t*5+ks)*1024 + h*256}")
        a.i("s_waitcnt lgkmcnt(0)")
        for ks in range(5):
            c = "0" if ks == 0 else vr(O + 4 * t)
            a.i(f"v_mfma_f32_16x16x32_bf16 {vr(O+4*t)}, {vr(WF+4*ks)}, {vr(ZF+4*ks)}, {c}")
    a.i("s_nop 7")
    a.i("s_nop 1")
    PK = 160
    for t in range(5):
        a.i(f"v_cvt_pk_bf16_f32 v{PK+2*t}, v{O+4*t}, v{O+4*t+1}")
        a.i(f"v_cvt_pk_bf16_f32 v{PK+2*t+1}, v{O+4*t+2}, v{O+4*t+3}")
    a.i(f"s_add_u32 s{sT0}, s{sN0}, s{sJ}")
    a.i(f"v_mul_u32_u24 v4, 9, v{vR}")
    a.i(f"v_add_u32 v4, s{sT0}, v4")
    a.i(f"s_mul_i32 s{sT1}, s{sTAU}, 143")
    a.i(f"v_cmp_gt_i32 vcc, s{sT1}, v4")
    a.i(f"v_lshlrev_b32 v5, 2, v4")
    a.i(f"s_lshl_b32 s{sT2}, s{sKH}, 1")
    a.i(f"s_add_u32 s{sT2}, s{sT2}, s{sPAR}")
    a.i(f"v_add_u32 v5, s{sT2}, v5")
    a.i(f"v_mul_u32_u24 v5, 288, v5")
    a.i(f"v_lshlrev_b32 v6, 3, v{vG}")
    a.i(f"v_add_u32 v5, v5, v6")
    a.i(f"s_lshl_b32 s{sT2}, s{sCH}, 7")
    a.i(f"v_add_u32 v5, s{sT2}, v5")
    a.i(f"v_mov_b32 v6, 0x7fffffff")
    a.i(f"v_cndmask_b32 v5, v5, v6, vcc")
    for t in range(5):
        a.i(f"buffer_store_dwordx2 v[{PK+2*t}:{PK+2*t+1}], v5, s[{S_OUT}:{S_OUT+3}], 0 offen offset:{32*t}")
    a.i("s_waitcnt vmcnt(0)")


def gen_tail_kernel(a):
    a.raw(f".globl {TAIL}\n.p2align 8\n.type {TAIL},@function")
    a.label(TAIL)
    decode_wg(a, "L_tend")
    gen_tail_body(a)
    a.label("L_tend")
    a.i("s_endpgm")


def build_m1():
    a = Asm()
    a.raw(f"; @launch kernel={KNAME} grid=(256,1,1) block=(256,1,1) lds={LDS_MAIN}")
    a.raw(f"; @launch kernel={TAIL} grid=(256,1,1) block=(256,1,1) lds=65536")
    a.raw('.amdgcn_target "amdgcn-amd-amdhsa--gfx950"\n.text')
    a.raw(f".globl {KNAME}\n.p2align 8\n.type {KNAME},@function")
    gen_main(a)
    t = Asm()
    gen_tail_kernel(t)
    a.raw(t.text())
    a.raw('.section .rodata,"a"')
    a.raw(kd(KNAME, 512, 256))
    a.raw(kd(TAIL, 256, 256))
    return a.text()


if __name__ == "__main__":
    out = sys.argv[1] if len(sys.argv) > 1 else "m1.s"
    open(out, "w").write(build_m1())
    print("wrote", out)
```

```python
import sys
from asmlib import Asm, vr, ar, kd

KNAME = "standalone__autoregressive_conv_wavenet__speech_kernel"

XROWS = 159
XB = XROWS * 288
L_X0, L_X1, L_XS = 0, XB, 2 * XB
L_RING = 3 * XB
RSLOTS = 6
LDS_MAIN = L_RING + 4 * RSLOTS * 1024
TAPB = 82944
W_BYTES = 31 * TAPB
H_OFF = 0x100000
H_TEAM = 9 * 9 * 2048

S_X, S_W, S_WO, S_OUT, S_WS = 16, 20, 24, 28, 32
sT, sJ, sTAU, sSEQ, sPAR, sB, sWAVE, sCH, sKH, sN0, sRING, sMASK = 36, 37, 38, 39, 40, 41, 42, 43, 44, 45, 46, 47
sI = 48
sT0, sT1, sT2, sT3 = 50, 51, 52, 53
sSOFF = 54

vLANE, vR, vG = 1, 2, 3
vXB = {"0": 10, "1": 11, "s": 12}
vPB = {"0": 13, "1": 14, "s": 15}
vWD, vWP, vTR, vXA, vXW, vXD = 16, 17, 18, 19, 20, 21
vS = 24
vH0 = (28, 32)
vH1 = (36, 40)
vHS = (44, 48)
vHT = 52
vAD = (68, 72)
vAB = (76, 80)
vAC = (84, 86)
vXA2, vXW2, vXA3, vXW3 = 88, 89, 90, 91
ACC = {"P": 148, "Q": 184, "R": 220}


STAMPS = False
DBGSTAMP = False
NSTAMP = [0]
S_ST = 64


def stamp(a, name):
    if not STAMPS:
        return
    k = NSTAMP[0]
    NSTAMP[0] += 1
    assert k < 15
    a.i(f"s_memrealtime s[96:97]")
    a.i(f"s_memtime s[98:99]")
    a.i("s_waitcnt lgkmcnt(0)")
    a.lg = []
    a.i(f"s_mov_b32 s{S_ST+2*k}, s96")
    a.i(f"s_mov_b32 s{S_ST+2*k+1}, s98")
    a.c(f"stamp {k}: {name}")


def stamp_flush(a, region):
    if not STAMPS:
        return
    n = NSTAMP[0]
    for k in range(2 * n):
        a.i(f"v_writelane_b32 v4, s{S_ST+k}, {k}")
    a.i(f"s_lshl_b32 s96, s2, 7")
    a.i(f"s_add_u32 s96, s96, {region}")
    a.i(f"v_lshlrev_b32 v5, 2, v{vLANE}")
    a.i(f"v_add_u32 v5, s96, v5")
    a.i(f"v_cmp_gt_u32 vcc, {2*n}, v{vLANE}")
    a.i(f"s_cmp_eq_u32 s{sWAVE}, 0")
    a.i(f"s_cselect_b64 s[96:97], -1, 0")
    a.i(f"s_and_b64 vcc, vcc, s[96:97]")
    a.i(f"v_mov_b32 v6, 0x7fffffff")
    a.i(f"v_cndmask_b32 v5, v6, v5, vcc")
    a.i(f"buffer_store_dword v4, v5, s[{S_WS}:{S_WS+3}], 0 offen")
    if DBGSTAMP:
        for k in range(n):
            a.i(f"s_sub_u32 s96, s{S_ST+2*k}, s{S_ST}")
            a.i(f"v_writelane_b32 v4, s96, {k}")
        a.i(f"s_mov_b32 s96, s12")
        a.i(f"s_and_b32 s97, s13, 0xffff")
        a.i(f"s_mov_b32 s98, 256")
        a.i(f"s_mov_b32 s99, 0x20000")
        a.i(f"v_lshlrev_b32 v5, 2, v{vLANE}")
        a.i(f"v_cmp_gt_u32 vcc, {n}, v{vLANE}")
        a.i(f"s_cmp_eq_u32 s{sWAVE}, 0")
        a.i(f"s_cselect_b64 s[62:63], -1, 0")
        a.i(f"s_and_b64 vcc, vcc, s[62:63]")
        a.i(f"s_cmp_eq_u32 s2, 8")
        a.i(f"s_cselect_b64 s[62:63], -1, 0")
        a.i(f"s_and_b64 vcc, vcc, s[62:63]")
        a.i(f"v_cndmask_b32 v5, v6, v5, vcc")
        a.i(f"buffer_store_dword v4, v5, s[96:99], 0 offen")
    a.i("s_waitcnt vmcnt(0)")
    NSTAMP[0] = 0


def srd(a, s, base, nbytes):
    a.i(f"s_mov_b32 s{s}, s{base}")
    a.i(f"s_and_b32 s{s+1}, s{base+1}, 0xffff")
    a.i(f"s_mov_b32 s{s+2}, {nbytes}")
    a.i(f"s_mov_b32 s{s+3}, 0x20000")


def decode_wg(a, exit_label):
    a.i(f"s_cmp_ge_u32 s2, 256")
    a.i(f"s_cbranch_scc1 {exit_label}")
    a.i(f"s_and_b32 s{sT0}, s2, 7")
    a.i(f"s_lshl_b32 s{sT0}, s{sT0}, 5")
    a.i(f"s_lshr_b32 s{sT1}, s2, 3")
    a.i(f"s_add_u32 s{sI}, s{sT0}, s{sT1}")
    a.i(f"s_cmp_ge_u32 s{sI}, 252")
    a.i(f"s_cbranch_scc1 {exit_label}")
    a.i(f"s_load_dwordx4 s[4:7], s[0:1], 0")
    a.i(f"s_load_dwordx4 s[8:11], s[0:1], 16")
    a.i(f"s_load_dwordx4 s[12:15], s[0:1], 32")
    a.i(f"s_mul_i32 s{sT}, s{sI}, 7282")
    a.i(f"s_lshr_b32 s{sT}, s{sT}, 16")
    a.i(f"s_mul_i32 s{sT0}, s{sT}, 9")
    a.i(f"s_sub_u32 s{sJ}, s{sI}, s{sT0}")
    a.i(f"s_mul_i32 s{sSEQ}, s{sT}, 9363")
    a.i(f"s_lshr_b32 s{sSEQ}, s{sSEQ}, 16")
    a.i(f"s_mul_i32 s{sT0}, s{sSEQ}, 7")
    a.i(f"s_sub_u32 s{sTAU}, s{sT}, s{sT0}")
    a.i(f"s_and_b32 s{sPAR}, s{sSEQ}, 1")
    a.i(f"s_lshr_b32 s{sB}, s{sSEQ}, 1")
    a.i(f"s_mul_i32 s{sN0}, s{sTAU}, 143")
    a.i(f"s_sub_u32 s{sN0}, s{sN0}, 1")
    a.i(f"v_lshrrev_b32 v4, 6, v0")
    a.i(f"v_and_b32 v{vLANE}, 63, v0")
    a.i(f"v_readfirstlane_b32 s{sWAVE}, v4")
    a.i(f"v_and_b32 v{vR}, 15, v{vLANE}")
    a.i(f"v_lshrrev_b32 v{vG}, 4, v{vLANE}")
    a.i(f"s_and_b32 s{sCH}, s{sWAVE}, 1")
    a.i(f"s_lshr_b32 s{sKH}, s{sWAVE}, 1")
    a.i(f"s_mul_i32 s{sT0}, s{sB}, 1152000")
    a.i("s_waitcnt lgkmcnt(0)")
    a.i(f"s_add_u32 s{S_X}, s4, s{sT0}")
    a.i(f"s_addc_u32 s{S_X+1}, s5, 0")
    a.i(f"s_and_b32 s{S_X+1}, s{S_X+1}, 0xffff")
    a.i(f"s_mov_b32 s{S_X+2}, 1152000")
    a.i(f"s_mov_b32 s{S_X+3}, 0x20000")
    srd(a, S_W, 6, W_BYTES)
    srd(a, S_WO, 8, 41472)
    a.i(f"s_add_u32 s{S_OUT}, s10, s{sT0}")
    a.i(f"s_addc_u32 s{S_OUT+1}, s11, 0")
    a.i(f"s_and_b32 s{S_OUT+1}, s{S_OUT+1}, 0xffff")
    a.i(f"s_mov_b32 s{S_OUT+2}, 1152000")
    a.i(f"s_mov_b32 s{S_OUT+3}, 0x20000")
    srd(a, S_WS, 14, 0x10000000)


class Step:
    def __init__(self, seg, j):
        self.seg, self.j = seg, j
        self.hasQ = not (seg in "AB" and j == 15)
        self.items = []
        if seg in ("A", "B"):
            so = 18432 if seg == "B" else 0
            self.items.append(("H0", 2 * j * TAPB + so, vWD))
            if self.hasQ:
                self.items.append(("H1", (2 * j + 1) * TAPB + so, vWD))
            self.shift = j
        else:
            self.items.append(("H0", 4 * j * TAPB, vWP))
            self.items.append(("H1", (4 * j + 1) * TAPB, vWP))
            self.shift = 2 * j

    def xkeys(self):
        ks = []
        for seq in ("0", "1", "s"):
            if seq == "1" and not self.hasQ:
                continue
            for m in range(9):
                ks.append((seq, self.seg, m - self.shift))
        return ks


STEPS = [Step("A", j) for j in range(16)] + [Step("B", j) for j in range(16)] + [Step("Pr", j) for j in range(4)]


def x_addr(key):
    seq, seg, q = key
    if seg == "Pr":
        return vPB[seq], (q + 15) * 288
    return vXB[seq], (q + 15) * 288 + (64 if seg == "B" else 0)


class XWin:
    def __init__(self):
        self.pool = {"0": list(range(0, 21)), "1": list(range(21, 42)), "s": list(range(42, 63))}
        self.slot = {}
        self.last = {}
        for si, st in enumerate(STEPS):
            for k in st.xkeys():
                self.last[k] = si

    def alloc(self, key):
        s = self.pool[key[0]].pop(0)
        self.slot[key] = s
        return s * 4

    def reg(self, key):
        return self.slot[key] * 4

    def release_after(self, si):
        for k, s in list(self.slot.items()):
            if self.last[k] == si:
                self.pool[k[0]].append(s)
                del self.slot[k]


def hs_valu(h0, h1, hs):
    st = []
    for stage in range(7):
        for d in range(4):
            t = vHT + 4 * d
            st.append([f"v_lshlrev_b32 v{t}, 16, v{h0+d}", f"v_lshlrev_b32 v{t+1}, 16, v{h1+d}",
                       f"v_and_b32 v{t+2}, s{sMASK}, v{h0+d}", f"v_and_b32 v{t+3}, s{sMASK}, v{h1+d}",
                       f"v_add_f32 v{t}, v{t}, v{t+1}", f"v_add_f32 v{t+2}, v{t+2}, v{t+3}",
                       f"v_cvt_pk_bf16_f32 v{hs+d}, v{t}, v{t+2}"][stage])
    return st


def gen_main(a, store_h=True):
    a.label(KNAME)
    if STAMPS:
        a.i("s_memrealtime s[96:97]")
        a.i("s_memtime s[98:99]")
        a.i("s_waitcnt lgkmcnt(0)")
        a.i(f"s_mov_b32 s{S_ST}, s96")
        a.i(f"s_mov_b32 s{S_ST+1}, s98")
        NSTAMP[0] = 1
    decode_wg(a, "L_end")
    stamp(a, "decoded")
    a.i(f"s_mov_b32 s{sMASK}, 0xffff0000")
    a.i(f"s_mul_i32 s{sRING}, s{sWAVE}, {RSLOTS*1024}")
    a.i(f"s_add_u32 s{sRING}, s{sRING}, {L_RING}")
    a.i(f"s_mul_i32 s{sT0}, s{sI}, 80")
    a.i(f"s_mul_i32 s{sT1}, s{sWAVE}, 20")
    a.i(f"s_add_u32 s{sT0}, s{sT0}, s{sT1}")
    a.i(f"v_min_u32 v4, 19, v{vLANE}")
    a.i(f"v_add_u32 v4, s{sT0}, v4")
    a.i(f"v_lshlrev_b32 v4, 7, v4")
    a.vmem(f"buffer_load_dword v22, v4, s[{S_W}:{S_W+3}], 0 offen", "pf")
    a.i(f"v_mul_u32_u24 v4, 3641, v{vLANE}")
    a.i(f"v_lshrrev_b32 v4, 16, v4")
    a.i(f"v_mul_u32_u24 v6, 18, v4")
    a.i(f"v_sub_u32 v6, v{vLANE}, v6")
    a.i(f"v_mul_u32_u24 v4, 1152, v4")
    a.i(f"v_lshlrev_b32 v6, 4, v6")
    a.i(f"v_add_u32 v4, v4, v6")
    a.i(f"s_sub_u32 s{sT0}, s{sN0}, 15")
    a.i(f"s_mul_i32 s{sT0}, s{sT0}, 1152")
    a.i(f"s_mul_i32 s{sT1}, s{sPAR}, 288")
    a.i(f"s_add_u32 s{sT0}, s{sT0}, s{sT1}")
    a.i(f"v_add_u32 v7, s{sT0}, v4")
    a.i(f"s_mul_i32 s{sT1}, s{sWAVE}, {3*1152}")
    a.i(f"v_add_u32 v{vXD}, s{sT1}, v7")
    a.i(f"v_add_u32 v8, 576, v{vXD}")
    a.i(f"v_add_u32 v9, {156*1152}, v7")
    a.i(f"v_add_u32 v7, {156*1152+576}, v7")
    a.i(f"s_mul_i32 s{sT2}, s{sWAVE}, 864")
    a.i("s_mov_b32 exec_lo, -1")
    a.i("s_mov_b32 exec_hi, 0x3fffff")
    for i in range(14):
        for sel in range(2):
            base = L_X1 if sel else L_X0
            if i < 13:
                a.i(f"s_add_u32 m0, s{sT2}, {base + 3456*i}")
                reg = 8 if sel else vXD
                a.i(f"v_add_u32 v{reg}, 13824, v{reg}" if i else "s_nop 0")
                a.vmem(f"buffer_load_dwordx4 v{reg}, s[{S_X}:{S_X+3}], 0 offen lds", "x")
            else:
                a.i(f"s_mov_b32 m0, {base + 156*288}")
                a.i("s_nop 0")
                a.vmem(f"buffer_load_dwordx4 v{7 if sel else 9}, s[{S_X}:{S_X+3}], 0 offen lds", "x")
    a.i("s_mov_b64 exec, -1")
    a.i(f"v_lshrrev_b32 v4, 3, v{vLANE}")
    a.i(f"v_lshrrev_b32 v5, 2, v4")
    a.i(f"v_lshlrev_b32 v5, 4, v5")
    a.i(f"v_and_b32 v6, 1, v4")
    a.i(f"v_lshlrev_b32 v6, 3, v6")
    a.i(f"v_add_u32 v5, v5, v6")
    a.i(f"v_and_b32 v6, 2, v4")
    a.i(f"v_lshlrev_b32 v6, 1, v6")
    a.i(f"v_add_u32 v5, v5, v6")
    a.i(f"v_bfe_u32 v6, v{vLANE}, 1, 2")
    a.i(f"v_add_u32 v5, v5, v6")
    a.i(f"v_and_b32 v6, 1, v{vLANE}")
    a.i(f"v_lshlrev_b32 v6, 4, v6")
    a.i(f"s_lshl_b32 s{sT0}, s{sJ}, 6")
    a.i(f"s_lshl_b32 s{sT1}, s{sCH}, 5")
    a.i(f"s_add_u32 s{sT0}, s{sT0}, s{sT1}")
    a.i(f"v_add_u32 v6, s{sT0}, v6")
    a.i(f"v_mul_u32_u24 v7, 576, v5")
    a.i(f"v_add_u32 v7, v7, v6")
    a.i(f"s_mul_i32 s{sT1}, s{sKH}, 36864")
    a.i(f"v_add_u32 v{vWD}, s{sT1}, v7")
    a.i(f"v_and_b32 v7, 15, v5")
    a.i(f"v_mul_u32_u24 v7, 576, v7")
    a.i(f"v_lshrrev_b32 v8, 4, v5")
    a.i(f"v_mul_u32_u24 v8, {2*TAPB}, v8")
    a.i(f"v_add_u32 v7, v7, v8")
    a.i(f"v_add_u32 v7, v7, v6")
    a.i(f"s_mul_i32 s{sT1}, s{sKH}, {16*TAPB}")
    a.i(f"s_add_u32 s{sT1}, s{sT1}, {128*576}")
    a.i(f"v_add_u32 v{vWP}, s{sT1}, v7")

    items = []
    for si, st in enumerate(STEPS):
        for it in st.items:
            items.append((si,) + it)
    slot_of = {(si, nm): k % RSLOTS for k, (si, nm, _, _) in enumerate(items)}

    def dma_instrs(si):
        out = []
        for nm, so, vreg in STEPS[si].items:
            sl = slot_of[(si, nm)]
            out.append(lambda sl=sl: a.i(f"s_add_u32 m0, s{sRING}, {sl*1024}"))
            out.append(lambda so=so: a.i(f"s_mov_b32 s{sSOFF}, {so}"))
            out.append(lambda vreg=vreg, si=si, nm=nm: a.vmem(
                f"buffer_load_dwordx4 v{vreg}, s[{S_W}:{S_W+3}], s{sSOFF} offen lds", ("w", si)))
        return out
    for si in range(3):
        for f in dma_instrs(si):
            f()
    a.i(f"s_lshl_b32 s{sT0}, s{sI}, 2")
    a.i(f"s_add_u32 s{sT0}, s{sT0}, s{sWAVE}")
    a.i(f"s_mul_i32 s{sT1}, s{sT0}, 203")
    a.i(f"s_lshr_b32 s{sT1}, s{sT1}, 16")
    a.i(f"s_mul_i32 s{sT1}, s{sT1}, 324")
    a.i(f"s_sub_u32 s{sT0}, s{sT0}, s{sT1}")
    a.i(f"s_lshl_b32 s{sT0}, s{sT0}, 7")
    a.i(f"v_mov_b32 v4, s{sT0}")
    a.vmem(f"buffer_load_dword v23, v4, s[{S_WO}:{S_WO+3}], 0 offen", "pf2")

    a.i(f"v_mul_u32_u24 v4, 2592, v{vR}")
    a.i(f"v_lshlrev_b32 v5, 4, v{vG}")
    a.i(f"v_add_u32 v5, v4, v5")
    a.i(f"s_lshl_b32 s{sT0}, s{sKH}, 7")
    a.i(f"v_add_u32 v{vXB['0']}, s{sT0}, v5")
    a.i(f"v_add_u32 v{vXB['1']}, {L_X1}, v{vXB['0']}")
    a.i(f"v_add_u32 v{vXB['s']}, {L_XS}, v{vXB['0']}")
    a.i(f"v_and_b32 v5, 1, v{vG}")
    a.i(f"v_lshlrev_b32 v5, 4, v5")
    a.i(f"v_add_u32 v5, v4, v5")
    a.i(f"v_lshrrev_b32 v6, 1, v{vG}")
    a.i(f"v_mul_u32_u24 v6, 288, v6")
    a.i(f"v_sub_u32 v5, v5, v6")
    a.i(f"s_mul_i32 s{sT0}, s{sKH}, {8*288}")
    a.i(f"s_sub_u32 s{sT0}, 256, s{sT0}")
    a.i(f"v_add_u32 v{vPB['0']}, s{sT0}, v5")
    a.i(f"v_add_u32 v{vPB['1']}, {L_X1}, v{vPB['0']}")
    a.i(f"v_add_u32 v{vPB['s']}, {L_XS}, v{vPB['0']}")
    a.i(f"v_lshrrev_b32 v4, 1, v{vG}")
    a.i(f"v_lshlrev_b32 v4, 9, v4")
    a.i(f"v_and_b32 v5, 1, v{vG}")
    a.i(f"v_lshlrev_b32 v5, 7, v5")
    a.i(f"v_add_u32 v4, v4, v5")
    a.i(f"v_lshrrev_b32 v5, 2, v{vR}")
    a.i(f"v_lshlrev_b32 v5, 5, v5")
    a.i(f"v_add_u32 v4, v4, v5")
    a.i(f"v_and_b32 v5, 3, v{vR}")
    a.i(f"v_lshlrev_b32 v5, 3, v5")
    a.i(f"v_add_u32 v4, v4, v5")
    a.i(f"v_add_u32 v{vTR}, s{sRING}, v4")
    a.i(f"v_mul_u32_u24 v4, 288, v{vR}")
    a.i(f"v_lshrrev_b32 v5, 1, v{vG}")
    a.i(f"v_mul_u32_u24 v5, {XB}, v5")
    a.i(f"v_and_b32 v6, 1, v{vG}")
    a.i(f"v_lshlrev_b32 v6, 4, v6")
    a.i(f"v_add3_u32 v5, v4, v5, v6")
    a.i(f"v_lshlrev_b32 v6, 3, v{vG}")
    a.i(f"v_add_u32 v6, v4, v6")
    a.i(f"v_add_u32 v6, {L_XS}, v6")
    a.i(f"s_lshl_b32 s{sT0}, s{sKH}, 7")
    a.i(f"s_lshl_b32 s{sT1}, s{sCH}, 5")
    a.i(f"s_add_u32 s{sT0}, s{sT0}, s{sT1}")
    a.i(f"v_add_u32 v{vXA}, s{sT0}, v5")
    a.i(f"v_add_u32 v{vXW}, s{sT0}, v6")
    a.i(f"s_mul_i32 s{sT0}, s{sWAVE}, {16*288}")
    a.i(f"s_add_u32 s{sT0}, s{sT0}, 256")
    a.i(f"v_add_u32 v{vXA2}, s{sT0}, v5")
    a.i(f"v_add_u32 v{vXW2}, s{sT0}, v6")
    a.i(f"s_lshl_b32 s{sT0}, s{sWAVE}, 4")
    a.i(f"s_add_u32 s{sT0}, s{sT0}, 128")
    a.i(f"s_min_u32 s{sT0}, s{sT0}, 143")
    a.i(f"s_mul_i32 s{sT0}, s{sT0}, 288")
    a.i(f"s_add_u32 s{sT0}, s{sT0}, 256")
    a.i(f"v_add_u32 v{vXA3}, s{sT0}, v5")
    a.i(f"v_add_u32 v{vXW3}, s{sT0}, v6")
    a.i(f"v_lshrrev_b32 v4, 3, v{vR}")
    a.i(f"v_and_b32 v5, 1, v{vG}")
    a.i(f"v_cmp_eq_u32 vcc, v4, v5")
    a.i(f"v_and_b32 v4, 1, v{vR}")
    a.i(f"v_lshlrev_b32 v4, 4, v4")
    a.i(f"v_mov_b32 v5, 0x3f80")
    a.i(f"v_lshlrev_b32 v4, v4, v5")
    a.i(f"v_cndmask_b32 v4, 0, v4, vcc")
    a.i(f"v_bfe_u32 v5, v{vR}, 1, 2")
    for d in range(4):
        a.i(f"v_cmp_eq_u32 vcc, {d}, v5")
        a.i("s_nop 1")
        a.i(f"v_cndmask_b32 v{vS+d}, 0, v4, vcc")

    def blocks(seg):
        if seg in ("A", "B"):
            so = 64 if seg == "B" else 0
            return [(vXA, vXW, min(16 * rb, 143) * 288 + so) for rb in range(10)]
        return [(vXA2, vXW2, 0), (vXA2, vXW2, 64 * 288), (vXA3, vXW3, 0)]

    def ad_read(bi, blk):
        ra, _, imm = blk
        return lambda: a.lds(f"ds_read_b128 {vr(vAB[bi % 2])}, v{ra} offset:{imm}", ("ab", bi % 2))

    def ad_mfma(bi):
        def f():
            a.wait_lg_emit(("ab", bi % 2))
            a.i(f"v_mfma_f32_16x16x32_bf16 {vr(vAD[bi % 2])}, {vr(vS)}, {vr(vAB[bi % 2])}, 0")
        return f

    def ad_fin(bi, blk):
        _, wa, imm = blk
        d, c = vAD[bi % 2], vAC[bi % 2]
        return [lambda: a.i(f"v_cvt_pk_bf16_f32 v{c}, v{d}, v{d+1}"),
                lambda: a.i(f"v_cvt_pk_bf16_f32 v{c+1}, v{d+2}, v{d+3}"),
                lambda: a.lds(f"ds_write_b64 v{wa}, v[{c}:{c+1}] offset:{imm}", "xw")]

    stamp(a, "issued")
    a.wait_vm_emit("x")
    a.i("s_barrier")
    stamp(a, "x landed")
    bl = blocks("A")
    ad_read(0, bl[0])()
    ad_read(1, bl[1])()
    for bi in range(10):
        ad_mfma(bi)()
        a.i("s_nop 7")
        for f in ad_fin(bi, bl[bi]):
            f()
        if bi + 2 < 10:
            ad_read(bi + 2, bl[bi + 2])()
    xw = XWin()

    def x_read(key):
        def f():
            reg, imm = x_addr(key)
            d = xw.alloc(key)
            a.lds(f"ds_read_b128 {ar(d)}, v{reg} offset:{imm}", ("x", key))
        return f

    def tr_reads(si):
        out = []
        b = si % 2
        for nm, _, _ in STEPS[si].items:
            sl = slot_of[(si, nm)]
            d = (vH0 if nm == "H0" else vH1)[b]
            for h in range(2):
                out.append(lambda d=d, h=h, sl=sl, si=si: a.lds(
                    f"ds_read_b64_tr_b16 v[{d+2*h}:{d+2*h+1}], v{vTR} offset:{sl*1024 + h*256}", ("tr", si)))
        return out

    def hs_ops(si):
        if not STEPS[si].hasQ:
            return []
        b = si % 2
        return [lambda s=s: a.i(s) for s in hs_valu(vH0[b], vH1[b], vHS[b])]

    first = STEPS[0].xkeys()
    for k in first:
        if k[0] != "s":
            x_read(k)()
    a.wait_vm_emit(("w", 0))
    for f in tr_reads(0):
        f()
    a.wait_lg_emit(("tr", 0))
    for f in hs_ops(0):
        f()
    a.lg_all()
    a.i("s_barrier")
    for k in first:
        if k[0] == "s":
            x_read(k)()
    loaded = set(first)

    extra = {si: [] for si in range(len(STEPS))}
    for (s0, nxt) in ((0, 16), (16, 32)):
        ks = STEPS[nxt].xkeys()
        raw = [k for k in ks if k[0] != "s"]
        sm = [k for k in ks if k[0] == "s"]
        for n, k in enumerate(raw):
            extra[s0 + 6 + n // 2].append(k)
        for n, k in enumerate(sm):
            extra[s0 + 7 + n].append(k)
    adjobs = {}
    for s0, seg in ((0, "B"), (16, "Pr")):
        bl = blocks(seg)
        for bi, blk in enumerate(bl):
            adjobs.setdefault(s0 + bi // 2, []).append((bi, blk))
    barrier_at = {6, 22}

    nst = len(STEPS)
    for si, st in enumerate(STEPS):
        if si in (0, 4, 16, 32):
            stamp(a, f"step {si}")
        b = si % 2
        mf = []
        for grp, seq, wreg in (("P", "0", vH0[b]), ("Q", "1", vH1[b]), ("R", "s", vHS[b] if st.hasQ else vH0[b])):
            if grp == "Q" and not st.hasQ:
                continue
            for m in range(9):
                key = (seq, st.seg, m - st.shift)
                acc = ACC[grp] + 4 * m
                c = "0" if si == 0 else vr(acc)
                mf.append((key, f"v_mfma_f32_16x16x32_bf16 {vr(acc)}, {vr(wreg)}, {{X}}, {c}"))
        fl = []
        nx = si + 1
        if si in barrier_at:
            fl.append(lambda: a.lg_all())
            fl.append(lambda: a.i("s_barrier"))
        if nx < nst:
            fl.append(lambda nx=nx: a.wait_vm_emit(("w", nx)))
            fl += tr_reads(nx)
            for k in STEPS[nx].xkeys():
                if k not in loaded and k not in [e for ee in extra.values() for e in ee]:
                    loaded.add(k)
                    fl.append(x_read(k))
        for k in extra[si]:
            if k not in loaded:
                loaded.add(k)
                fl.append(x_read(k))
        prev = adjobs.get(si - 1, [])
        cur = adjobs.get(si, [])
        if si + 3 < nst:
            fl += dma_instrs(si + 3)
        mid = []
        for bi, blk in prev:
            mid.append(ad_mfma(bi))
        if nx < nst:
            hv = hs_ops(nx)
            if hv:
                fl.append(lambda nx=nx: a.wait_lg_emit(("tr", nx)))
        else:
            hv = []
        fl += mid
        fl += hv[:12]
        for bi, blk in prev:
            fl += ad_fin(bi, blk)
        for bi, blk in cur:
            fl.append(ad_read(bi, blk))
        fl += hv[12:]
        need = [("x", k) for k in st.xkeys()] + [("tr", si)]
        a.wait_lg_emit(need)
        n, k = len(mf), len(fl)
        j = 0
        for g, (key, s) in enumerate(mf):
            a.i(s.replace("{X}", ar(xw.reg(key))))
            want = min(k, -(-((g + 1) * k) // n)) if k > 2 * n else min(k, 2 * (g + 1))
            while j < want:
                fl[j]()
                j += 1
        while j < k:
            fl[j]()
            j += 1
        xw.release_after(si)

    stamp(a, "loop end")
    if store_h:
        gen_h_store(a)
    stamp(a, "stored")
    stamp_flush(a, 0x800000)
    a.label("L_end")
    a.i("s_endpgm")


def gen_h_store(a):
    P, Q, R = ACC["P"], ACC["Q"], ACC["R"]
    a.c("combine: Y1 = R - P - Q ; Y0 = P + Q(n-1)")
    a.i("s_nop 7")
    for m in range(9):
        for d in range(4):
            a.i(f"v_sub_f32 v{R+4*m+d}, v{R+4*m+d}, v{P+4*m+d}")
    for m in range(9):
        for d in range(4):
            a.i(f"v_sub_f32 v{R+4*m+d}, v{R+4*m+d}, v{Q+4*m+d}")
    for m in range(1, 9):
        for d in range(4):
            a.i(f"v_add_f32 v{P+4*m+d}, v{P+4*m+d}, v{Q+4*(m-1)+d}")
    for d in range(4):
        a.i(f"v_add_f32_dpp v{P+d}, v{Q+32+d}, v{P+d} row_shr:1 row_mask:0xf bank_mask:0xf")
    a.lg_all()
    a.i("s_barrier")
    a.i(f"v_lshlrev_b32 v4, 4, v{vLANE}")
    a.i(f"s_mul_i32 s{sT0}, s{sWAVE}, 9216")
    a.i(f"v_add_u32 v5, s{sT0}, v4")
    a.i(f"s_xor_b32 s{sT1}, s{sWAVE}, 2")
    a.i(f"s_mul_i32 s{sT1}, s{sT1}, 9216")
    a.i(f"v_add_u32 v6, s{sT1}, v4")
    a.i(f"s_cmp_eq_u32 s{sKH}, 0")
    a.i("s_cbranch_scc0 L_red1")
    for m in range(9):
        a.i(f"ds_write_b128 v5, {vr(R+4*m)} offset:{1024*m}")
    a.i("s_waitcnt lgkmcnt(0)")
    a.i("s_barrier")
    for m in range(9):
        a.i(f"ds_read_b128 {vr(Q+4*m)}, v6 offset:{1024*m}")
    a.i("s_waitcnt lgkmcnt(0)")
    for m in range(9):
        for d in range(4):
            a.i(f"v_add_f32 v{R+4*m+d}, v{P+4*m+d}, v{Q+4*m+d}")
    a.i("s_branch L_red2")
    a.label("L_red1")
    for m in range(9):
        a.i(f"ds_write_b128 v5, {vr(P+4*m)} offset:{1024*m}")
    a.i("s_waitcnt lgkmcnt(0)")
    a.i("s_barrier")
    for m in range(9):
        a.i(f"ds_read_b128 {vr(Q+4*m)}, v6 offset:{1024*m}")
    a.i("s_waitcnt lgkmcnt(0)")
    for m in range(9):
        for d in range(4):
            a.i(f"v_add_f32 v{R+4*m+d}, v{R+4*m+d}, v{Q+4*m+d}")
    a.label("L_red2")
    for m in range(9):
        a.i(f"v_cvt_pk_bf16_f32 v{P+2*m}, v{R+4*m}, v{R+4*m+1}")
        a.i(f"v_cvt_pk_bf16_f32 v{P+2*m+1}, v{R+4*m+2}, v{R+4*m+3}")
    a.i(f"v_mov_b32 v{P+18}, 0")
    a.i(f"v_mov_b32 v{P+19}, 0")
    a.i(f"s_mul_i32 s{sT0}, s{sT}, {H_TEAM}")
    a.i(f"s_lshl_b32 s{sT1}, s{sJ}, 11")
    a.i(f"s_add_u32 s{sT0}, s{sT0}, s{sT1}")
    a.i(f"s_lshl_b32 s{sT1}, s{sKH}, 10")
    a.i(f"s_add_u32 s{sT0}, s{sT0}, s{sT1}")
    a.i(f"s_lshl_b32 s{sT1}, s{sCH}, 9")
    a.i(f"s_add_u32 s{sT0}, s{sT0}, s{sT1}")
    a.i(f"s_add_u32 s{sT0}, s{sT0}, {H_OFF}")
    a.i(f"v_and_b32 v4, 1, v{vG}")
    a.i(f"v_mul_u32_u24 v5, 18432, v4")
    a.i(f"v_lshrrev_b32 v6, 1, v{vG}")
    a.i(f"v_lshlrev_b32 v6, 8, v6")
    a.i(f"v_lshlrev_b32 v7, 4, v{vR}")
    a.i(f"v_add3_u32 v5, v5, v6, v7")
    a.i(f"v_add_u32 v5, s{sT0}, v5")
    a.i(f"v_cmp_eq_u32 vcc, 1, v4")
    a.i(f"v_mov_b32 v6, 0x7fffffff")
    a.i("s_nop 0")
    a.i(f"v_cndmask_b32 v6, v5, v6, vcc")
    for m in range(0, 9, 2):
        r0 = P + 2 * m
        a.i(f"v_permlane16_swap_b32 v{r0}, v{r0+2}")
        a.i(f"v_permlane16_swap_b32 v{r0+1}, v{r0+3}")
    for m in range(0, 9, 2):
        r0 = P + 2 * m
        a.i(f"s_mov_b32 s{sT1}, {m*18432}")
        a.i(f"buffer_store_dwordx4 {vr(r0)}, v{6 if m == 8 else 5}, s[{S_WS}:{S_WS+3}], s{sT1} offen")
    a.i("s_waitcnt vmcnt(0)")


TAIL = "tail_kernel"
L_WO = 0
L_Z = 49152


def gen_tail_body(a):
    a.i(f"v_lshrrev_b32 v4, 3, v{vLANE}")
    a.i(f"v_lshrrev_b32 v5, 2, v4")
    a.i(f"v_lshlrev_b32 v5, 4, v5")
    a.i(f"v_and_b32 v6, 1, v4")
    a.i(f"v_lshlrev_b32 v6, 3, v6")
    a.i(f"v_add_u32 v5, v5, v6")
    a.i(f"v_and_b32 v6, 2, v4")
    a.i(f"v_lshlrev_b32 v6, 1, v6")
    a.i(f"v_add_u32 v5, v5, v6")
    a.i(f"v_bfe_u32 v6, v{vLANE}, 1, 2")
    a.i(f"v_add_u32 v5, v5, v6")
    a.i(f"v_mul_u32_u24 v5, 288, v5")
    a.i(f"v_and_b32 v6, 1, v{vLANE}")
    a.i(f"v_lshlrev_b32 v6, 4, v6")
    a.i(f"v_add_u32 v8, v5, v6")
    for i in range(12):
        a.i(f"s_add_u32 s{sT0}, s{sWAVE}, {4*i}")
        a.i(f"s_min_u32 s{sT0}, s{sT0}, 44")
        a.i(f"s_mul_i32 s{sT1}, s{sT0}, 13108")
        a.i(f"s_lshr_b32 s{sT1}, s{sT1}, 16")
        a.i(f"s_mul_i32 s{sT2}, s{sT1}, 5")
        a.i(f"s_sub_u32 s{sT2}, s{sT0}, s{sT2}")
        a.i(f"s_mul_i32 s{sT2}, s{sT2}, {32*288}")
        a.i(f"s_lshl_b32 s{sT1}, s{sT1}, 5")
        a.i(f"s_add_u32 s{sT1}, s{sT1}, s{sT2}")
        a.i(f"s_lshl_b32 s{sT0}, s{sT0}, 10")
        a.i(f"s_add_u32 m0, s{sT0}, {L_WO}")
        a.i("s_nop 0")
        a.vmem(f"buffer_load_dwordx4 v8, s[{S_WO}:{S_WO+3}], s{sT1} offen lds", "wo")
    a.i(f"s_mul_i32 s{sT0}, s{sT}, {H_TEAM}")
    a.i(f"s_mul_i32 s{sT1}, s{sJ}, 18432")
    a.i(f"s_add_u32 s{sT0}, s{sT0}, s{sT1}")
    a.i(f"s_lshl_b32 s{sT1}, s{sKH}, 10")
    a.i(f"s_add_u32 s{sT0}, s{sT0}, s{sT1}")
    a.i(f"s_lshl_b32 s{sT1}, s{sCH}, 12")
    a.i(f"s_add_u32 s{sT0}, s{sT0}, s{sT1}")
    a.i(f"s_add_u32 s{sT0}, s{sT0}, {H_OFF}")
    a.i(f"v_lshlrev_b32 v4, 8, v{vG}")
    a.i(f"v_lshlrev_b32 v5, 4, v{vR}")
    a.i(f"v_add_u32 v4, v4, v5")
    a.i(f"v_add_u32 v10, s{sT0}, v4")
    a.i(f"v_lshrrev_b32 v5, 1, v{vG}")
    a.i(f"v_lshlrev_b32 v5, 10, v5")
    a.i(f"v_add_u32 v11, v10, v5")
    a.i(f"v_add_u32 v11, {4*2048+512}, v11")
    F = (100, 108, 116)
    Gr = (104, 112, 120)
    for s in range(2):
        a.vmem(f"buffer_load_dwordx4 {vr(F[s])}, v10, s[{S_WS}:{S_WS+3}], 0 offen offset:{s*2048}", "h")
        a.vmem(f"buffer_load_dwordx4 {vr(Gr[s])}, v11, s[{S_WS}:{S_WS+3}], 0 offen offset:{s*2048}", "h")
    a.i(f"v_cmp_gt_u32 vcc, 2, v{vG}")
    a.i(f"s_cmp_eq_u32 s{sCH}, 0")
    a.i(f"s_cselect_b64 s[56:57], -1, 0")
    a.i(f"s_and_b64 vcc, vcc, s[56:57]")
    a.i(f"v_add_u32 v12, {4*2048}, v10")
    a.i(f"v_add_u32 v13, {4*2048}, v11")
    a.i(f"v_mov_b32 v14, 0x7fffffff")
    a.i(f"v_cndmask_b32 v12, v14, v12, vcc")
    a.i(f"v_cndmask_b32 v13, v14, v13, vcc")
    a.vmem(f"buffer_load_dwordx4 {vr(F[2])}, v12, s[{S_WS}:{S_WS+3}], 0 offen", "h")
    a.vmem(f"buffer_load_dwordx4 {vr(Gr[2])}, v13, s[{S_WS}:{S_WS+3}], 0 offen", "h")
    a.i("s_mov_b32 s58, 0xc038aa3b")
    a.i("s_mov_b32 s59, 0xbfb8aa3b")
    a.i("s_mov_b32 s60, 0x42700000")
    a.i(f"s_mov_b32 s{sMASK}, 0xffff0000")
    a.wait_vm_emit("h")
    Z = 124
    for s in range(3):
        for d in range(4):
            a.i(f"v_lshlrev_b32 v{40+2*d}, 16, v{F[s]+d}")
            a.i(f"v_and_b32 v{41+2*d}, s{sMASK}, v{F[s]+d}")
            a.i(f"v_lshlrev_b32 v{48+2*d}, 16, v{Gr[s]+d}")
            a.i(f"v_and_b32 v{49+2*d}, s{sMASK}, v{Gr[s]+d}")
        for e in range(8):
            a.i(f"v_mul_f32 v{40+e}, s58, v{40+e}")
        for e in range(8):
            a.i(f"v_mul_f32 v{48+e}, s59, v{48+e}")
        for e in range(8):
            a.i(f"v_min_f32 v{40+e}, s60, v{40+e}")
        for e in range(8):
            a.i(f"v_exp_f32 v{48+e}, v{48+e}")
        for e in range(8):
            a.i(f"v_exp_f32 v{40+e}, v{40+e}")
        for e in range(8):
            a.i(f"v_add_f32 v{56+e}, 1.0, v{40+e}")
        for e in range(8):
            a.i(f"v_fma_f32 v{56+e}, v{56+e}, v{48+e}, v{56+e}")
        for e in range(8):
            a.i(f"v_rcp_f32 v{56+e}, v{56+e}")
        for e in range(8):
            a.i(f"v_sub_f32 v{40+e}, 1.0, v{40+e}")
        for e in range(8):
            a.i(f"v_mul_f32 v{40+e}, v{40+e}, v{56+e}")
        for d in range(4):
            a.i(f"v_cvt_pk_bf16_f32 v{Z+4*s+d}, v{40+2*d}, v{41+2*d}")
    a.i(f"s_mul_i32 s{sT0}, s{sKH}, 5120")
    a.i(f"s_lshl_b32 s{sT1}, s{sCH}, 11")
    a.i(f"s_add_u32 s{sT0}, s{sT0}, s{sT1}")
    a.i(f"s_add_u32 s{sT0}, s{sT0}, {L_Z}")
    a.i(f"v_lshlrev_b32 v4, 4, v{vLANE}")
    a.i(f"v_add_u32 v5, s{sT0}, v4")
    a.i(f"ds_write_b128 v5, {vr(Z)}")
    a.i(f"ds_write_b128 v5, {vr(Z+4)} offset:1024")
    a.i(f"s_cmp_eq_u32 s{sCH}, 0")
    a.i("s_cbranch_scc0 L_noz4")
    a.i(f"ds_write_b128 v5, {vr(Z+8)} offset:4096")
    a.label("L_noz4")
    a.vm_all()
    a.lg_all()
    a.i("s_barrier")
    a.i(f"s_mul_i32 s{sT0}, s{sKH}, 5120")
    a.i(f"s_add_u32 s{sT0}, s{sT0}, {L_Z}")
    a.i(f"v_add_u32 v5, s{sT0}, v4")
    ZF = 60
    for ks in range(5):
        a.i(f"ds_read_b128 {vr(ZF+4*ks)}, v5 offset:{1024*ks}")
    a.i(f"v_lshrrev_b32 v6, 1, v{vG}")
    a.i(f"v_lshlrev_b32 v6, 9, v6")
    a.i(f"v_and_b32 v7, 1, v{vG}")
    a.i(f"v_lshlrev_b32 v7, 7, v7")
    a.i(f"v_add_u32 v6, v6, v7")
    a.i(f"v_lshrrev_b32 v7, 2, v{vR}")
    a.i(f"v_lshlrev_b32 v7, 5, v7")
    a.i(f"v_add_u32 v6, v6, v7")
    a.i(f"v_and_b32 v7, 3, v{vR}")
    a.i(f"v_lshlrev_b32 v7, 3, v7")
    a.i(f"v_add_u32 v6, v6, v7")
    a.i(f"s_mul_i32 s{sT0}, s{sCH}, {4*5*1024}")
    a.i(f"s_add_u32 s{sT0}, s{sT0}, {L_WO}")
    a.i(f"v_add_u32 v6, s{sT0}, v6")
    O = 140
    WF = 80
    for t in range(5):
        for ks in range(5):
            for h in range(2):
                a.i(f"ds_read_b64_tr_b16 v[{WF+4*ks+2*h}:{WF+4*ks+2*h+1}], v6 offset:{(t*5+ks)*1024 + h*256}")
        a.i("s_waitcnt lgkmcnt(0)")
        for ks in range(5):
            c = "0" if ks == 0 else vr(O + 4 * t)
            a.i(f"v_mfma_f32_16x16x32_bf16 {vr(O+4*t)}, {vr(WF+4*ks)}, {vr(ZF+4*ks)}, {c}")
    a.i("s_nop 7")
    a.i("s_nop 1")
    PK = 160
    for t in range(5):
        a.i(f"v_cvt_pk_bf16_f32 v{PK+2*t}, v{O+4*t}, v{O+4*t+1}")
        a.i(f"v_cvt_pk_bf16_f32 v{PK+2*t+1}, v{O+4*t+2}, v{O+4*t+3}")
    a.i(f"s_add_u32 s{sT0}, s{sN0}, s{sJ}")
    a.i(f"v_mul_u32_u24 v4, 9, v{vR}")
    a.i(f"v_add_u32 v4, s{sT0}, v4")
    a.i(f"s_mul_i32 s{sT1}, s{sTAU}, 143")
    a.i(f"v_cmp_gt_i32 vcc, s{sT1}, v4")
    a.i(f"v_lshlrev_b32 v5, 2, v4")
    a.i(f"s_lshl_b32 s{sT2}, s{sKH}, 1")
    a.i(f"s_add_u32 s{sT2}, s{sT2}, s{sPAR}")
    a.i(f"v_add_u32 v5, s{sT2}, v5")
    a.i(f"v_mul_u32_u24 v5, 288, v5")
    a.i(f"v_lshlrev_b32 v6, 3, v{vG}")
    a.i(f"v_add_u32 v5, v5, v6")
    a.i(f"s_lshl_b32 s{sT2}, s{sCH}, 7")
    a.i(f"v_add_u32 v5, s{sT2}, v5")
    a.i(f"v_mov_b32 v6, 0x7fffffff")
    a.i(f"v_cndmask_b32 v5, v5, v6, vcc")
    for t in range(5):
        a.i(f"buffer_store_dwordx2 v[{PK+2*t}:{PK+2*t+1}], v5, s[{S_OUT}:{S_OUT+3}], 0 offen offset:{32*t}")
    a.i("s_waitcnt vmcnt(0)")


def gen_tail_kernel(a):
    a.raw(f".globl {TAIL}\n.p2align 8\n.type {TAIL},@function")
    a.label(TAIL)
    if STAMPS:
        a.i("s_memrealtime s[96:97]")
        a.i("s_memtime s[98:99]")
        a.i("s_waitcnt lgkmcnt(0)")
        a.i(f"s_mov_b32 s{S_ST}, s96")
        a.i(f"s_mov_b32 s{S_ST+1}, s98")
        NSTAMP[0] = 1
    decode_wg(a, "L_tend")
    gen_tail_body(a)
    stamp(a, "tail end")
    stamp_flush(a, 0x810000)
    a.label("L_tend")
    a.i("s_endpgm")


def build_m1():
    a = Asm()
    a.raw(f"; @launch kernel={KNAME} grid=(256,1,1) block=(256,1,1) lds={LDS_MAIN}")
    a.raw(f"; @launch kernel={TAIL} grid=(256,1,1) block=(256,1,1) lds=65536")
    a.raw('.amdgcn_target "amdgcn-amd-amdhsa--gfx950"\n.text')
    a.raw(f".globl {KNAME}\n.p2align 8\n.type {KNAME},@function")
    gen_main(a)
    t = Asm()
    gen_tail_kernel(t)
    a.raw(t.text())
    a.raw('.section .rodata,"a"')
    a.raw(kd(KNAME, 512, 256))
    a.raw(kd(TAIL, 256, 256))
    return a.text()


if __name__ == "__main__":
    out = sys.argv[1] if len(sys.argv) > 1 else "m1.s"
    STAMPS = "stamps" in sys.argv
    DBGSTAMP = "dbg" in sys.argv
    open(out, "w").write(build_m1())
    print("wrote", out)
```

```python
import sys
from asmlib import Asm, vr, ar, kd

KNAME = "standalone__autoregressive_conv_wavenet__speech_kernel"

XROWS = 159
XB = XROWS * 288
L_X0, L_X1, L_XS = 0, XB, 2 * XB
L_RING = 3 * XB
RSLOTS = 6
LDS_MAIN = L_RING + 4 * RSLOTS * 1024
TAPB = 82944
W_BYTES = 31 * TAPB
H_OFF = 0x100000
H_TEAM = 9 * 9 * 2048
L_SLAB, L_WO, L_Z = 0, 36864, 36864 + 49152

S_X, S_W, S_WO, S_OUT, S_WS = 16, 20, 24, 28, 32
sT, sJ, sTAU, sSEQ, sPAR, sB, sWAVE, sCH, sKH, sN0, sRING, sMASK = 36, 37, 38, 39, 40, 41, 42, 43, 44, 45, 46, 47
sI, sTAG = 48, 49
sT0, sT1, sT2, sT3 = 50, 51, 52, 53
sSOFF, sTAP, sTAP3 = 54, 55, 56
sSLOT = 57
S_ST = 64

vLANE, vR, vG = 1, 2, 3
vXB = {"0": 10, "1": 11, "s": 12}
vPB = {"0": 13, "1": 14, "s": 15}
vWD, vWP, vTR, vXA, vXW, vXD = 16, 17, 18, 19, 20, 21
vS = 24
vH0 = (28, 32, 92)
vH1 = (36, 40, 96)
vHS = (44, 48)
vHT = 52
vAD = (68, 72)
vAB = (76, 80)
vAC = (84, 86)
vXA2, vXW2, vXA3, vXW3 = 88, 89, 90, 91
vHA, vHB = 100, 101
vWOA = 103
ACC = {"P": 148, "Q": 184, "R": 220}

OPT = dict(stamps=False, dbg=False, proto="flag")
NSTAMP = [0]


def stamp(a, name, first=False):
    if not OPT["stamps"]:
        return
    k = 0 if first else NSTAMP[0]
    NSTAMP[0] = k + 1
    assert k < 16
    a.i("s_memrealtime s[96:97]")
    a.i("s_memtime s[98:99]")
    a.i("s_waitcnt lgkmcnt(0)")
    a.lg = []
    a.i(f"s_mov_b32 s{S_ST+2*k}, s96")
    a.i(f"s_mov_b32 s{S_ST+2*k+1}, s98")
    a.c(f"stamp {k}: {name}")


def stamp_flush(a):
    if not OPT["stamps"]:
        return
    n = NSTAMP[0]
    for k in range(2 * n):
        a.i(f"v_writelane_b32 v4, s{S_ST+k}, {k}")
    a.i("s_lshl_b32 s96, s2, 7")
    a.i("s_add_u32 s96, s96, 0x800000")
    a.i(f"v_lshlrev_b32 v5, 2, v{vLANE}")
    a.i("v_add_u32 v5, s96, v5")
    a.i(f"v_cmp_gt_u32 vcc, {2*n}, v{vLANE}")
    a.i(f"s_cmp_eq_u32 s{sWAVE}, 0")
    a.i("s_cselect_b64 s[96:97], -1, 0")
    a.i("s_and_b64 vcc, vcc, s[96:97]")
    a.i("v_mov_b32 v6, 0x7fffffff")
    a.i("v_cndmask_b32 v5, v6, v5, vcc")
    a.i(f"buffer_store_dword v4, v5, s[{S_WS}:{S_WS+3}], 0 offen")
    if OPT["dbg"]:
        for k in range(n):
            a.i(f"s_sub_u32 s96, s{S_ST+2*k}, s{S_ST}")
            a.i(f"v_writelane_b32 v4, s96, {k}")
        a.i("s_mov_b32 s96, s12")
        a.i("s_and_b32 s97, s13, 0xffff")
        a.i("s_mov_b32 s98, 256")
        a.i("s_mov_b32 s99, 0x20000")
        a.i(f"v_lshlrev_b32 v5, 2, v{vLANE}")
        a.i(f"v_cmp_gt_u32 vcc, {n}, v{vLANE}")
        a.i(f"s_cmp_eq_u32 s{sWAVE}, 0")
        a.i("s_cselect_b64 s[62:63], -1, 0")
        a.i("s_and_b64 vcc, vcc, s[62:63]")
        a.i("s_cmp_eq_u32 s2, 8")
        a.i("s_cselect_b64 s[62:63], -1, 0")
        a.i("s_and_b64 vcc, vcc, s[62:63]")
        a.i("v_cndmask_b32 v5, v6, v5, vcc")
        a.i("buffer_store_dword v4, v5, s[96:99], 0 offen")
    a.i("s_waitcnt vmcnt(0)")


def srd(a, s, base, nbytes):
    a.i(f"s_mov_b32 s{s}, s{base}")
    a.i(f"s_and_b32 s{s+1}, s{base+1}, 0xffff")
    a.i(f"s_mov_b32 s{s+2}, {nbytes}")
    a.i(f"s_mov_b32 s{s+3}, 0x20000")


def decode_wg(a, exit_label):
    a.i("s_cmp_ge_u32 s2, 256")
    a.i(f"s_cbranch_scc1 {exit_label}")
    a.i(f"s_and_b32 s{sT0}, s2, 7")
    a.i(f"s_lshl_b32 s{sT0}, s{sT0}, 5")
    a.i(f"s_lshr_b32 s{sT1}, s2, 3")
    a.i(f"s_add_u32 s{sI}, s{sT0}, s{sT1}")
    a.i(f"s_cmp_ge_u32 s{sI}, 252")
    a.i(f"s_cbranch_scc1 {exit_label}")
    a.i("s_load_dwordx4 s[4:7], s[0:1], 0")
    a.i("s_load_dwordx4 s[8:11], s[0:1], 16")
    a.i("s_load_dwordx4 s[12:15], s[0:1], 32")
    a.i(f"s_mul_i32 s{sT}, s{sI}, 7282")
    a.i(f"s_lshr_b32 s{sT}, s{sT}, 16")
    a.i(f"s_mul_i32 s{sT0}, s{sT}, 9")
    a.i(f"s_sub_u32 s{sJ}, s{sI}, s{sT0}")
    a.i(f"s_mul_i32 s{sSEQ}, s{sT}, 9363")
    a.i(f"s_lshr_b32 s{sSEQ}, s{sSEQ}, 16")
    a.i(f"s_mul_i32 s{sT0}, s{sSEQ}, 7")
    a.i(f"s_sub_u32 s{sTAU}, s{sT}, s{sT0}")
    a.i(f"s_and_b32 s{sPAR}, s{sSEQ}, 1")
    a.i(f"s_lshr_b32 s{sB}, s{sSEQ}, 1")
    a.i(f"s_mul_i32 s{sN0}, s{sTAU}, 143")
    a.i(f"s_sub_u32 s{sN0}, s{sN0}, 1")
    a.i("v_lshrrev_b32 v4, 6, v0")
    a.i(f"v_and_b32 v{vLANE}, 63, v0")
    a.i(f"v_readfirstlane_b32 s{sWAVE}, v4")
    a.i(f"v_and_b32 v{vR}, 15, v{vLANE}")
    a.i(f"v_lshrrev_b32 v{vG}, 4, v{vLANE}")
    a.i(f"s_and_b32 s{sCH}, s{sWAVE}, 1")
    a.i(f"s_lshr_b32 s{sKH}, s{sWAVE}, 1")
    a.i(f"s_mul_i32 s{sT0}, s{sB}, 1152000")


def make_srds(a):
    a.i("s_waitcnt lgkmcnt(0)")
    a.i(f"s_add_u32 s{S_X}, s4, s{sT0}")
    a.i(f"s_addc_u32 s{S_X+1}, s5, 0")
    a.i(f"s_and_b32 s{S_X+1}, s{S_X+1}, 0xffff")
    a.i(f"s_mov_b32 s{S_X+2}, 1152000")
    a.i(f"s_mov_b32 s{S_X+3}, 0x20000")
    srd(a, S_W, 6, W_BYTES)
    srd(a, S_WO, 8, 41472)
    a.i(f"s_add_u32 s{S_OUT}, s10, s{sT0}")
    a.i(f"s_addc_u32 s{S_OUT+1}, s11, 0")
    a.i(f"s_and_b32 s{S_OUT+1}, s{S_OUT+1}, 0xffff")
    a.i(f"s_mov_b32 s{S_OUT+2}, 1152000")
    a.i(f"s_mov_b32 s{S_OUT+3}, 0x20000")
    srd(a, S_WS, 14, 0x10000000)


class Step:
    def __init__(self, seg, j):
        self.seg, self.j = seg, j
        self.hasQ = not (seg in "AB" and j == 15)
        self.items = []
        if seg in ("A", "B"):
            so = 18432 if seg == "B" else 0
            self.items.append(("H0", 2 * j * TAPB + so, vWD))
            if self.hasQ:
                self.items.append(("H1", (2 * j + 1) * TAPB + so, vWD))
            self.shift = j
        else:
            self.items.append(("H0", 4 * j * TAPB, vWP))
            self.items.append(("H1", (4 * j + 1) * TAPB, vWP))
            self.shift = 2 * j

    def xkeys(self):
        ks = []
        for seq in ("0", "1", "s"):
            if seq == "1" and not self.hasQ:
                continue
            for m in range(9):
                ks.append((seq, self.seg, m - self.shift))
        return ks


STEPS = [Step("A", j) for j in range(16)] + [Step("B", j) for j in range(16)] + [Step("Pr", j) for j in range(4)]
NST = len(STEPS)


def x_addr(key):
    seq, seg, q = key
    if seg == "Pr":
        return vPB[seq], (q + 15) * 288
    return vXB[seq], (q + 15) * 288 + (64 if seg == "B" else 0)


class XWin:
    def __init__(self):
        self.pool = {"0": list(range(0, 21)), "1": list(range(21, 42)), "s": list(range(42, 63))}
        self.slot = {}
        self.last = {}
        for si, st in enumerate(STEPS):
            for k in st.xkeys():
                self.last[k] = si

    def alloc(self, key):
        s = self.pool[key[0]].pop(0)
        self.slot[key] = s
        return s * 4

    def reg(self, key):
        return self.slot[key] * 4

    def release_after(self, si):
        for k, s in list(self.slot.items()):
            if self.last[k] == si:
                self.pool[k[0]].append(s)
                del self.slot[k]


def hs_valu(h0, h1, hs):
    st = []
    for stage in range(7):
        for d in range(4):
            t = vHT + 4 * d
            st.append([f"v_lshlrev_b32 v{t}, 16, v{h0+d}", f"v_lshlrev_b32 v{t+1}, 16, v{h1+d}",
                       f"v_and_b32 v{t+2}, s{sMASK}, v{h0+d}", f"v_and_b32 v{t+3}, s{sMASK}, v{h1+d}",
                       f"v_add_f32 v{t}, v{t}, v{t+1}", f"v_add_f32 v{t+2}, v{t+2}, v{t+3}",
                       f"v_cvt_pk_bf16_f32 v{hs+d}, v{t}, v{t+2}"][stage])
    return st


def w_granule_kk(a, dst):
    a.i(f"v_lshrrev_b32 v4, 3, v{vLANE}")
    a.i("v_lshrrev_b32 v5, 2, v4")
    a.i("v_lshlrev_b32 v5, 4, v5")
    a.i("v_and_b32 v6, 1, v4")
    a.i("v_lshlrev_b32 v6, 3, v6")
    a.i("v_add_u32 v5, v5, v6")
    a.i("v_and_b32 v6, 2, v4")
    a.i("v_lshlrev_b32 v6, 1, v6")
    a.i("v_add_u32 v5, v5, v6")
    a.i(f"v_bfe_u32 v6, v{vLANE}, 1, 2")
    a.i(f"v_add_u32 v{dst}, v5, v6")


def tr_base(a, dst, sbase):
    a.i(f"v_lshrrev_b32 v4, 1, v{vG}")
    a.i("v_lshlrev_b32 v4, 9, v4")
    a.i(f"v_and_b32 v5, 1, v{vG}")
    a.i("v_lshlrev_b32 v5, 7, v5")
    a.i("v_add_u32 v4, v4, v5")
    a.i(f"v_lshrrev_b32 v5, 2, v{vR}")
    a.i("v_lshlrev_b32 v5, 5, v5")
    a.i("v_add_u32 v4, v4, v5")
    a.i(f"v_and_b32 v5, 3, v{vR}")
    a.i("v_lshlrev_b32 v5, 3, v5")
    a.i("v_add_u32 v4, v4, v5")
    a.i(f"v_add_u32 v{dst}, s{sbase}, v4")


def gen_kernel(a):
    a.label(KNAME)
    stamp(a, "entry", first=True)
    decode_wg(a, "L_end")
    a.i(f"v_mul_u32_u24 v4, 3641, v{vLANE}")
    a.i("v_lshrrev_b32 v4, 16, v4")
    a.i("v_mul_u32_u24 v6, 18, v4")
    a.i(f"v_sub_u32 v6, v{vLANE}, v6")
    a.i("v_mul_u32_u24 v4, 1152, v4")
    a.i("v_lshlrev_b32 v6, 4, v6")
    a.i("v_add_u32 v4, v4, v6")
    a.i(f"s_sub_u32 s{sT1}, s{sN0}, 15")
    a.i(f"s_mul_i32 s{sT1}, s{sT1}, 1152")
    a.i(f"s_mul_i32 s{sT2}, s{sPAR}, 288")
    a.i(f"s_add_u32 s{sT1}, s{sT1}, s{sT2}")
    a.i(f"v_add_u32 v7, s{sT1}, v4")
    a.i(f"s_mul_i32 s{sT2}, s{sJ}, 18")
    a.i(f"s_mul_i32 s{sT3}, s{sWAVE}, 9")
    a.i(f"s_add_u32 s{sT2}, s{sT2}, s{sT3}")
    a.i(f"v_lshrrev_b32 v8, 2, v{vLANE}")
    a.i("v_min_u32 v8, 8, v8")
    a.i(f"v_add_u32 v8, s{sT3}, v8")
    a.i("v_lshrrev_b32 v9, 1, v8")
    a.i(f"s_mul_i32 s{sT2}, s{sJ}, 18")
    a.i(f"v_add_u32 v9, s{sT2}, v9")
    a.i("v_mul_u32_u24 v9, 1152, v9")
    a.i("v_and_b32 v8, 1, v8")
    a.i("v_mul_u32_u24 v8, 576, v8")
    a.i("v_add_u32 v9, v9, v8")
    a.i(f"v_and_b32 v8, 3, v{vLANE}")
    a.i("v_mul_u32_u24 v8, 92, v8")
    a.i("v_add_u32 v9, v9, v8")
    a.i(f"v_add_u32 v22, s{sT1}, v9")
    a.i("v_and_b32 v22, -4, v22")
    a.i(f"s_mul_i32 s{sT2}, s{sI}, 80")
    a.i(f"s_mul_i32 s{sT3}, s{sWAVE}, 20")
    a.i(f"s_add_u32 s{sT2}, s{sT2}, s{sT3}")
    a.i(f"v_min_u32 v23, 19, v{vLANE}")
    a.i(f"v_add_u32 v23, s{sT2}, v23")
    a.i("v_lshlrev_b32 v23, 7, v23")
    make_srds(a)
    a.vmem(f"buffer_load_dword v22, v22, s[{S_X}:{S_X+3}], 0 offen", "pf")
    a.vmem(f"buffer_load_dword v23, v23, s[{S_W}:{S_W+3}], 0 offen", "pf")
    if OPT["proto"]:
        a.i(f"s_lshl_b32 s{sT2}, s{sT}, 8")
        a.i(f"s_add_u32 s{sT2}, s{sT2}, 128")
        a.i(f"s_load_dword s{sTAG}, s[14:15], s{sT2}")
    a.i("v_mov_b32 v147, v7")
    a.i(f"s_mov_b32 s{sMASK}, 0xffff0000")
    a.i(f"s_mul_i32 s{sRING}, s{sWAVE}, {RSLOTS*1024}")
    a.i(f"s_add_u32 s{sRING}, s{sRING}, {L_RING}")
    for k in range(RSLOTS):
        a.i(f"s_add_u32 s{sSLOT+k}, s{sRING}, {k*1024}")
    a.i(f"s_mov_b32 s{sTAP}, {TAPB}")
    a.i(f"s_mov_b32 s{sTAP3}, {3*TAPB}")
    w_granule_kk(a, 5)
    a.i(f"v_and_b32 v6, 1, v{vLANE}")
    a.i("v_lshlrev_b32 v6, 4, v6")
    a.i(f"s_lshl_b32 s{sT0}, s{sJ}, 6")
    a.i(f"s_lshl_b32 s{sT1}, s{sCH}, 5")
    a.i(f"s_add_u32 s{sT0}, s{sT0}, s{sT1}")
    a.i(f"v_add_u32 v6, s{sT0}, v6")
    a.i("v_mul_u32_u24 v7, 576, v5")
    a.i("v_add_u32 v7, v7, v6")
    a.i(f"s_mul_i32 s{sT1}, s{sKH}, 36864")
    a.i(f"v_add_u32 v{vWD}, s{sT1}, v7")
    a.i("v_and_b32 v7, 15, v5")
    a.i("v_mul_u32_u24 v7, 576, v7")
    a.i("v_lshrrev_b32 v8, 4, v5")
    a.i(f"v_mul_u32_u24 v8, {2*TAPB}, v8")
    a.i("v_add_u32 v7, v7, v8")
    a.i("v_add_u32 v7, v7, v6")
    a.i(f"s_mul_i32 s{sT1}, s{sKH}, {16*TAPB}")
    a.i(f"s_add_u32 s{sT1}, s{sT1}, {128*576}")
    a.i(f"v_add_u32 v{vWP}, s{sT1}, v7")

    items = []
    for si, st in enumerate(STEPS):
        for it in st.items:
            items.append((si,) + it)
    slot_of = {(si, nm): k % RSLOTS for k, (si, nm, _, _) in enumerate(items)}
    cur_soff = [None]

    def dma_instrs(si):
        out = []
        for nm, so, vreg in STEPS[si].items:
            sl = slot_of[(si, nm)]

            def f_soff(so=so):
                prev = cur_soff[0]
                if prev is not None and so - prev == TAPB:
                    a.i(f"s_add_u32 s{sSOFF}, s{sSOFF}, s{sTAP}")
                elif prev is not None and so - prev == 3 * TAPB:
                    a.i(f"s_add_u32 s{sSOFF}, s{sSOFF}, s{sTAP3}")
                else:
                    a.i(f"s_mov_b32 s{sSOFF}, {so}")
                cur_soff[0] = so
            out.append(lambda sl=sl: a.i(f"s_mov_b32 m0, s{sSLOT+sl}"))
            out.append(f_soff)
            out.append(lambda vreg=vreg, si=si: a.vmem(
                f"buffer_load_dwordx4 v{vreg}, s[{S_W}:{S_W+3}], s{sSOFF} offen lds", ("w", si)))
        return out
    for si in range(3):
        for f in dma_instrs(si):
            f()
    a.i("v_mov_b32 v7, v147")
    a.i(f"s_mul_i32 s{sT1}, s{sWAVE}, {3*1152}")
    a.i(f"v_add_u32 v{vXD}, s{sT1}, v7")
    a.i(f"v_add_u32 v8, 576, v{vXD}")
    a.i(f"v_add_u32 v9, {156*1152}, v7")
    a.i(f"v_add_u32 v7, {156*1152+576}, v7")
    a.i(f"s_mul_i32 s{sT2}, s{sWAVE}, 864")
    a.i("s_mov_b32 exec_lo, -1")
    a.i("s_mov_b32 exec_hi, 0x3fffff")
    for i in range(14):
        for sel in range(2):
            base = L_X1 if sel else L_X0
            if i < 13:
                a.i(f"s_add_u32 m0, s{sT2}, {base + 3456*i}")
                reg = 8 if sel else vXD
                a.i(f"v_add_u32 v{reg}, 13824, v{reg}" if i else "s_nop 0")
                a.vmem(f"buffer_load_dwordx4 v{reg}, s[{S_X}:{S_X+3}], 0 offen lds", "x")
            else:
                a.i(f"s_mov_b32 m0, {base + 156*288}")
                a.i("s_nop 0")
                a.vmem(f"buffer_load_dwordx4 v{7 if sel else 9}, s[{S_X}:{S_X+3}], 0 offen lds", "x")
    a.i("s_mov_b64 exec, -1")
    a.i(f"s_lshl_b32 s{sT0}, s{sI}, 2")
    a.i(f"s_add_u32 s{sT0}, s{sT0}, s{sWAVE}")
    a.i(f"s_mul_i32 s{sT1}, s{sT0}, 203")
    a.i(f"s_lshr_b32 s{sT1}, s{sT1}, 16")
    a.i(f"s_mul_i32 s{sT1}, s{sT1}, 324")
    a.i(f"s_sub_u32 s{sT0}, s{sT0}, s{sT1}")
    a.i(f"s_lshl_b32 s{sT0}, s{sT0}, 7")
    a.i(f"v_mov_b32 v4, s{sT0}")
    a.vmem(f"buffer_load_dword v102, v4, s[{S_WO}:{S_WO+3}], 0 offen", "pf2")

    a.i(f"v_mul_u32_u24 v4, 2592, v{vR}")
    a.i(f"v_lshlrev_b32 v5, 4, v{vG}")
    a.i("v_add_u32 v5, v4, v5")
    a.i(f"s_lshl_b32 s{sT0}, s{sKH}, 7")
    a.i(f"v_add_u32 v{vXB['0']}, s{sT0}, v5")
    a.i(f"v_add_u32 v{vXB['1']}, {L_X1}, v{vXB['0']}")
    a.i(f"v_add_u32 v{vXB['s']}, {L_XS}, v{vXB['0']}")
    a.i(f"v_and_b32 v5, 1, v{vG}")
    a.i("v_lshlrev_b32 v5, 4, v5")
    a.i("v_add_u32 v5, v4, v5")
    a.i(f"v_lshrrev_b32 v6, 1, v{vG}")
    a.i("v_mul_u32_u24 v6, 288, v6")
    a.i("v_sub_u32 v5, v5, v6")
    a.i(f"s_mul_i32 s{sT0}, s{sKH}, {8*288}")
    a.i(f"s_sub_u32 s{sT0}, 256, s{sT0}")
    a.i(f"v_add_u32 v{vPB['0']}, s{sT0}, v5")
    a.i(f"v_add_u32 v{vPB['1']}, {L_X1}, v{vPB['0']}")
    a.i(f"v_add_u32 v{vPB['s']}, {L_XS}, v{vPB['0']}")
    tr_base(a, vTR, sRING)
    a.i(f"v_mul_u32_u24 v4, 288, v{vR}")
    a.i(f"v_lshrrev_b32 v5, 1, v{vG}")
    a.i(f"v_mul_u32_u24 v5, {XB}, v5")
    a.i(f"v_and_b32 v6, 1, v{vG}")
    a.i("v_lshlrev_b32 v6, 4, v6")
    a.i("v_add3_u32 v5, v4, v5, v6")
    a.i(f"v_lshlrev_b32 v6, 3, v{vG}")
    a.i("v_add_u32 v6, v4, v6")
    a.i(f"v_add_u32 v6, {L_XS}, v6")
    a.i(f"s_lshl_b32 s{sT0}, s{sKH}, 7")
    a.i(f"s_lshl_b32 s{sT1}, s{sCH}, 5")
    a.i(f"s_add_u32 s{sT0}, s{sT0}, s{sT1}")
    a.i(f"v_add_u32 v{vXA}, s{sT0}, v5")
    a.i(f"v_add_u32 v{vXW}, s{sT0}, v6")
    a.i(f"s_mul_i32 s{sT0}, s{sWAVE}, {16*288}")
    a.i(f"s_add_u32 s{sT0}, s{sT0}, 256")
    a.i(f"v_add_u32 v{vXA2}, s{sT0}, v5")
    a.i(f"v_add_u32 v{vXW2}, s{sT0}, v6")
    a.i(f"s_lshl_b32 s{sT0}, s{sWAVE}, 4")
    a.i(f"s_add_u32 s{sT0}, s{sT0}, 128")
    a.i(f"s_min_u32 s{sT0}, s{sT0}, 143")
    a.i(f"s_mul_i32 s{sT0}, s{sT0}, 288")
    a.i(f"s_add_u32 s{sT0}, s{sT0}, 256")
    a.i(f"v_add_u32 v{vXA3}, s{sT0}, v5")
    a.i(f"v_add_u32 v{vXW3}, s{sT0}, v6")
    a.i(f"v_lshrrev_b32 v4, 3, v{vR}")
    a.i(f"v_and_b32 v5, 1, v{vG}")
    a.i("v_cmp_eq_u32 vcc, v4, v5")
    a.i(f"v_and_b32 v4, 1, v{vR}")
    a.i("v_lshlrev_b32 v4, 4, v4")
    a.i("v_mov_b32 v5, 0x3f80")
    a.i("v_lshlrev_b32 v4, v4, v5")
    a.i("v_cndmask_b32 v4, 0, v4, vcc")
    a.i(f"v_bfe_u32 v5, v{vR}, 1, 2")
    for d in range(4):
        a.i(f"v_cmp_eq_u32 vcc, {d}, v5")
        a.i("s_nop 1")
        a.i(f"v_cndmask_b32 v{vS+d}, 0, v4, vcc")
    a.i(f"s_mul_i32 s{sT0}, s{sT}, {H_TEAM}")
    a.i(f"s_lshl_b32 s{sT1}, s{sJ}, 11")
    a.i(f"s_add_u32 s{sT0}, s{sT0}, s{sT1}")
    a.i(f"s_lshl_b32 s{sT1}, s{sKH}, 10")
    a.i(f"s_add_u32 s{sT0}, s{sT0}, s{sT1}")
    a.i(f"s_lshl_b32 s{sT1}, s{sCH}, 9")
    a.i(f"s_add_u32 s{sT0}, s{sT0}, s{sT1}")
    a.i(f"s_add_u32 s{sT0}, s{sT0}, {H_OFF}")
    a.i(f"v_and_b32 v4, 1, v{vG}")
    a.i("v_mul_u32_u24 v5, 18432, v4")
    a.i(f"v_lshrrev_b32 v6, 1, v{vG}")
    a.i("v_lshlrev_b32 v6, 8, v6")
    a.i(f"v_lshlrev_b32 v7, 4, v{vR}")
    a.i("v_add3_u32 v5, v5, v6, v7")
    a.i(f"v_add_u32 v{vHA}, s{sT0}, v5")
    a.i("v_cmp_eq_u32 vcc, 1, v4")
    a.i("v_mov_b32 v6, 0x7fffffff")
    a.i("s_nop 0")
    a.i(f"v_cndmask_b32 v{vHB}, v{vHA}, v6, vcc")

    def blocks(seg):
        if seg in ("A", "B"):
            so = 64 if seg == "B" else 0
            return [(vXA, vXW, min(16 * rb, 143) * 288 + so) for rb in range(10)]
        return [(vXA2, vXW2, 0), (vXA2, vXW2, 64 * 288), (vXA3, vXW3, 0)]

    def ad_read(bi, blk):
        ra, _, imm = blk
        return lambda: a.lds(f"ds_read_b128 {vr(vAB[bi % 2])}, v{ra} offset:{imm}", ("ab", bi % 2))

    def ad_mfma(bi):
        def f():
            a.wait_lg_emit(("ab", bi % 2))
            a.i(f"v_mfma_f32_16x16x32_bf16 {vr(vAD[bi % 2])}, {vr(vS)}, {vr(vAB[bi % 2])}, 0")
        return f

    def ad_fin(bi, blk):
        _, wa, imm = blk
        d, c = vAD[bi % 2], vAC[bi % 2]
        return [lambda: a.i(f"v_cvt_pk_bf16_f32 v{c}, v{d}, v{d+1}"),
                lambda: a.i(f"v_cvt_pk_bf16_f32 v{c+1}, v{d+2}, v{d+3}"),
                lambda: a.lds(f"ds_write_b64 v{wa}, v[{c}:{c+1}] offset:{imm}", "xw")]

    xw = XWin()

    def x_read(key):
        def f():
            reg, imm = x_addr(key)
            d = xw.alloc(key)
            a.lds(f"ds_read_b128 {ar(d)}, v{reg} offset:{imm}", ("x", key))
        return f

    def tr_reads(si):
        out = []
        b = si % 3
        for nm, _, _ in STEPS[si].items:
            sl = slot_of[(si, nm)]
            d = (vH0 if nm == "H0" else vH1)[b]
            for h in range(2):
                f = (lambda d=d, h=h, sl=sl, si=si: a.lds(
                    f"ds_read_b64_tr_b16 v[{d+2*h}:{d+2*h+1}], v{vTR} offset:{sl*1024 + h*256}", ("tr", si)))
                f.istr = True
                out.append(f)
        return out

    def hs_ops(si):
        if not STEPS[si].hasQ:
            return []
        return [lambda s=s: a.i(s) for s in hs_valu(vH0[si % 3], vH1[si % 3], vHS[si % 2])]

    stamp(a, "issued")
    a.wait_vm_emit(("w", 1))
    for f in tr_reads(0) + tr_reads(1):
        f()
    a.wait_vm_emit("x")
    a.i("s_waitcnt lgkmcnt(0)")
    a.lg = []
    for f in dma_instrs(3):
        f()
    a.i("s_barrier")
    stamp(a, "x landed")
    if OPT["proto"]:
        a.i(f"s_mul_i32 s{sTAG}, s{sTAG}, 1664525")
        a.i(f"s_add_u32 s{sTAG}, s{sTAG}, 1013904223")
    first = STEPS[0].xkeys()
    for k in first:
        if k[0] != "s":
            x_read(k)()
    loaded = set(k for k in first if k[0] != "s")

    extra = {si: [] for si in range(NST)}
    for (s0, nxt) in ((0, 16), (16, 32)):
        ks = STEPS[nxt].xkeys()
        raw = [k for k in ks if k[0] != "s"]
        sm = [k for k in ks if k[0] == "s"]
        for n, k in enumerate(raw):
            extra[s0 + 6 + n // 2].append(k)
        for n, k in enumerate(sm):
            extra[s0 + 8 + min(n, 7)].append(k)
    all_extra = {e for ee in extra.values() for e in ee}
    adjobs = {}
    for s0, seg in ((0, "B"), (16, "Pr")):
        per = 2 if seg == "B" else 1
        for bi, blk in enumerate(blocks(seg)):
            adjobs.setdefault(s0 + 2 + bi // per, []).append((bi, blk))
    barrier_at = {8, 24}

    def typed(f, t):
        f.t = t
        return f

    def emit_gaps(mf, qmem, qval):
        qmem, qval = list(qmem), list(qval)
        n = len(mf)
        for g, m in enumerate(mf):
            m()
            left = n - g
            nvec = 0
            ns = 0
            took = False
            while qmem:
                t = qmem[0].t
                if t == "s":
                    if ns >= 3:
                        break
                    qmem.pop(0)()
                    ns += 1
                elif t == "m":
                    if took:
                        break
                    qmem.pop(0)()
                    took = True
                elif t == "d":
                    if nvec:
                        break
                    qmem.pop(0)()
                    nvec = 2
                    break
                else:
                    nl = sum(1 for f in qmem if f.t != "s")
                    if nvec >= 2 or (nvec >= 1 and nl <= left - 1):
                        break
                    qmem.pop(0)()
                    nvec += 1
            while qval and nvec < 2:
                qval.pop(0)()
                nvec += 1
        for f in qmem + qval:
            f()

    def mf_list(si, groups):
        st = STEPS[si]
        out = []
        for grp in groups:
            seq = {"P": "0", "Q": "1", "R": "s"}[grp]
            if grp == "Q" and not st.hasQ:
                continue
            wreg = {"P": vH0[si % 3], "Q": vH1[si % 3], "R": vHS[si % 2] if st.hasQ else vH0[si % 3]}[grp]
            for m in range(9):
                key = (seq, st.seg, m - st.shift)
                acc = ACC[grp] + 4 * m
                c = "0" if si == 0 else vr(acc)
                out.append(lambda key=key, acc=acc, wreg=wreg, c=c: a.i(
                    f"v_mfma_f32_16x16x32_bf16 {vr(acc)}, {vr(wreg)}, {ar(xw.reg(key))}, {c}"))
        return out

    def T(fs, t):
        return [typed(f, t) for f in fs]

    def dma_typed(si):
        fs = dma_instrs(si)
        return [typed(f, "d" if k % 3 == 2 else "s") for k, f in enumerate(fs)]

    def wo_dma():
        out = []
        for k in range(12):
            if k % 4 == 0:
                out.append(typed(lambda k=k: a.i(f"s_add_u32 m0, s{sT3}, {k*1024}"), "s"))
                out.append(typed(lambda k=k: a.i(f"s_add_u32 s{sT2}, s{sT1}, {k*1024}"), "s"))
            out.append(typed(lambda k=k: a.vmem(
                f"buffer_load_dwordx4 v{vWOA}, s[{S_WO}:{S_WO+3}], s{sT2} offen offset:{(k % 4)*1024} lds", "wo"), "d"))
        return out

    TB, TD = 104, ACC["R"]
    bl = blocks("A")
    q = []
    for bi, (ra, wa, imm) in enumerate(bl):
        q.append(typed(lambda bi=bi, ra=ra, imm=imm: a.lds(f"ds_read_b128 {vr(TB+4*bi)}, v{ra} offset:{imm}", ("pb", bi)), "l"))
    for k in STEPS[1].xkeys():
        if k not in loaded and k[0] != "s":
            loaded.add(k)
            q.append(typed(x_read(k), "l"))
    q.append(typed(lambda: a.wait_vm_emit(("w", 2)), "s"))
    q += T(tr_reads(2), "l")
    for bi in range(9):
        def f(bi=bi):
            a.wait_lg_emit(("pb", bi))
            a.i(f"v_mfma_f32_16x16x32_bf16 {vr(TD+4*bi)}, {vr(vS)}, {vr(TB+4*bi)}, 0")
        q.append(typed(f, "m"))
    def f10():
        a.wait_lg_emit(("pb", 9))
        a.i(f"v_mfma_f32_16x16x32_bf16 {vr(vAD[0])}, {vr(vS)}, {vr(TB+36)}, 0")
    q.append(typed(f10, "m"))
    stamp(a, "step 0")
    a.wait_lg_emit([("x", k) for k in first if k[0] != "s"] + [("tr", 0)])
    emit_gaps(mf_list(0, "PQ"), q, hs_ops(0))
    q = []
    fin = []
    for bi, (ra, wa, imm) in enumerate(bl):
        d = TD + 4 * bi if bi < 9 else vAD[0]
        fin.append(lambda d=d: a.i(f"v_cvt_pk_bf16_f32 v{d}, v{d}, v{d+1}"))
        fin.append(lambda d=d: a.i(f"v_cvt_pk_bf16_f32 v{d+1}, v{d+2}, v{d+3}"))
        fin.append(lambda d=d, wa=wa, imm=imm: a.lds(f"ds_write_b64 v{wa}, v[{d}:{d+1}] offset:{imm}", "xw"))
    a.wait_lg_emit([("x", k) for k in STEPS[1].xkeys() if k[0] != "s"] + [("tr", 1)])
    q = dma_typed(4)
    emit_gaps(mf_list(1, "PQ"), q, fin)
    a.lg_all()
    a.i("s_barrier")
    for k in first + STEPS[1].xkeys():
        if k[0] == "s" and (k not in loaded or k in first) and k not in xw.slot:
            loaded.add(k)
            x_read(k)()
    for f in hs_ops(1):
        f()
    a.wait_lg_emit([("x", k) for k in first if k[0] == "s"])
    q = []
    for k in STEPS[2].xkeys():
        if k not in loaded:
            loaded.add(k)
            q.append(typed(x_read(k), "l"))
    q.append(typed(lambda: a.wait_vm_emit(("w", 3)), "s"))
    q += T(tr_reads(3), "l")
    q.append(typed(lambda: a.wait_lg_emit(("tr", 2)), "s"))
    q += dma_typed(5)
    m01 = mf_list(0, "R") + mf_list(1, "R")
    def need_x1():
        a.wait_lg_emit([("x", k) for k in STEPS[1].xkeys() if k[0] == "s"])
    m01[9] = (lambda f=m01[9]: (need_x1(), f()))
    emit_gaps(m01, q, hs_ops(2))
    xw.release_after(0)
    xw.release_after(1)

    for si in range(2, NST):
        st = STEPS[si]
        if si in (4, 16, 32):
            stamp(a, f"step {si}")
        mem = []
        if si in barrier_at:
            mem.append(typed(lambda: a.lg_all(), "s"))
            mem.append(typed(lambda: a.i("s_barrier"), "s"))
        prev = adjobs.get(si - 1, [])
        cur = adjobs.get(si, [])
        mem += [typed(ad_mfma(bi), "m") for bi, blk in prev]
        if si + 2 < NST:
            mem.append(typed(lambda n=si + 2: a.wait_vm_emit(("w", n)), "s"))
            mem += T(tr_reads(si + 2), "l")
        if si + 1 < NST:
            for k in STEPS[si + 1].xkeys():
                if k not in loaded and k not in all_extra:
                    loaded.add(k)
                    mem.append(typed(x_read(k), "l"))
        for k in extra[si]:
            if k not in loaded:
                loaded.add(k)
                mem.append(typed(x_read(k), "l"))
        if si + 4 < NST:
            mem += dma_typed(si + 4)
        hv = hs_ops(si + 1) if si + 1 < NST else []
        adv = []
        for bi, blk in prev:
            c1, c2, w = ad_fin(bi, blk)
            adv += [c1, c2]
            mem.append(typed(w, "lw"))
        mem += [typed(ad_read(bi, blk), "l") for bi, blk in cur]
        if si == NST - 2:
            a.i(f"s_mul_i32 s{sT1}, s{sWAVE}, 12288")
            a.i(f"s_add_u32 s{sT3}, s{sT1}, {L_WO}")
            a.i(f"v_lshlrev_b32 v{vWOA}, 4, v{vLANE}")
        if si == NST - 1:
            mem = [typed(lambda: a.i("s_barrier"), "s")] + wo_dma()
        val = hv[:10] + adv + hv[10:]
        if adv:
            mem2 = []
            for f in mem:
                if f.t == "lw":
                    f.t = "l"
                    tailw = f
                    mem2.append(("w", f))
                else:
                    mem2.append(("o", f))
            writes = [f for k_, f in mem2 if k_ == "w"]
            mem = [f for k_, f in mem2 if k_ == "o"]
            val = hv[:10] + adv + writes + hv[10:]
        need = [("x", k) for k in st.xkeys()] + [("tr", si), ("tr", si + 1)]
        a.wait_lg_emit(need)
        if si == NST - 1:
            a.lg_all()
        emit_gaps(mf_list(si, "PQR"), mem, val)
        xw.release_after(si)

    stamp(a, "loop end")
    gen_tail(a)
    stamp(a, "done")
    stamp_flush(a)
    a.label("L_end")
    a.i("s_endpgm")


def gen_tail(a):
    P, Q, R = ACC["P"], ACC["Q"], ACC["R"]
    a.i("s_nop 7")
    for m in range(9):
        for d in (0, 2):
            r = 4 * m + d
            a.i(f"v_pk_add_f32 v[{R+r}:{R+r+1}], v[{R+r}:{R+r+1}], v[{P+r}:{P+r+1}] neg_lo:[0,1] neg_hi:[0,1]")
    for m in range(9):
        for d in (0, 2):
            r = 4 * m + d
            a.i(f"v_pk_add_f32 v[{R+r}:{R+r+1}], v[{R+r}:{R+r+1}], v[{Q+r}:{Q+r+1}] neg_lo:[0,1] neg_hi:[0,1]")
    for m in range(1, 9):
        for d in (0, 2):
            r = 4 * m + d
            a.i(f"v_pk_add_f32 v[{P+r}:{P+r+1}], v[{P+r}:{P+r+1}], v[{Q+r-4}:{Q+r-3}]")
    for d in range(4):
        a.i(f"v_add_f32_dpp v{P+d}, v{Q+32+d}, v{P+d} row_shr:1 row_mask:0xf bank_mask:0xf")
    a.i(f"v_lshlrev_b32 v4, 4, v{vLANE}")
    a.i(f"s_mul_i32 s{sT0}, s{sWAVE}, 9216")
    a.i(f"v_add_u32 v5, s{sT0}, v4")
    a.i(f"s_xor_b32 s{sT1}, s{sWAVE}, 2")
    a.i(f"s_mul_i32 s{sT1}, s{sT1}, 9216")
    a.i(f"v_add_u32 v6, s{sT1}, v4")
    a.i(f"s_cmp_eq_u32 s{sKH}, 0")
    a.i("s_cbranch_scc0 L_red1")
    for keep, send, lab in ((P, R, None), (R, P, "L_red1")):
        if lab:
            a.label(lab)
        for m in range(9):
            a.i(f"ds_write_b128 v5, {vr(send+4*m)} offset:{1024*m}")
        a.i("s_waitcnt lgkmcnt(0)")
        a.i("s_barrier")
        for m in range(9):
            a.i(f"ds_read_b128 {vr(Q+4*m)}, v6 offset:{1024*m}")
        for m in range(9):
            a.i(f"s_waitcnt lgkmcnt({8-m})")
            for d in (0, 2):
                r = 4 * m + d
                a.i(f"v_pk_add_f32 v[{R+r}:{R+r+1}], v[{keep+r}:{keep+r+1}], v[{Q+r}:{Q+r+1}]")
        if not lab:
            a.i("s_branch L_red2")
    a.label("L_red2")
    for m in range(9):
        a.i(f"v_cvt_pk_bf16_f32 v{P+2*m}, v{R+4*m}, v{R+4*m+1}")
        a.i(f"v_cvt_pk_bf16_f32 v{P+2*m+1}, v{R+4*m+2}, v{R+4*m+3}")
    a.i(f"v_mov_b32 v{P+18}, 0")
    a.i(f"v_mov_b32 v{P+19}, 0")
    a.i("s_nop 0")
    for m in range(0, 9, 2):
        r0 = P + 2 * m
        a.i(f"v_permlane16_swap_b32 v{r0}, v{r0+2}")
        a.i(f"v_permlane16_swap_b32 v{r0+1}, v{r0+3}")
    for m in range(0, 9, 2):
        r0 = P + 2 * m
        a.i(f"s_mov_b32 s{sT1}, {m*18432}")
        a.vmem(f"buffer_store_dwordx4 {vr(r0)}, v{vHB if m == 8 else vHA}, s[{S_WS}:{S_WS+3}], s{sT1} offen sc1", "hs")
    stamp(a, "h stores issued")
    a.i(f"s_mul_i32 s{sT0}, s{sT}, {H_TEAM}")
    a.i(f"s_mul_i32 s{sT1}, s{sJ}, 18432")
    a.i(f"s_add_u32 s{sT0}, s{sT0}, s{sT1}")
    a.i(f"s_lshl_b32 s{sT1}, s{sKH}, 10")
    a.i(f"s_add_u32 s{sT0}, s{sT0}, s{sT1}")
    a.i(f"s_lshl_b32 s{sT1}, s{sCH}, 12")
    a.i(f"s_add_u32 s{sT0}, s{sT0}, s{sT1}")
    a.i(f"s_add_u32 s{sT0}, s{sT0}, {H_OFF}")
    a.i(f"v_lshlrev_b32 v4, 8, v{vG}")
    a.i(f"v_lshlrev_b32 v5, 4, v{vR}")
    a.i("v_add_u32 v4, v4, v5")
    a.i(f"v_add_u32 v10, s{sT0}, v4")
    a.i(f"v_lshrrev_b32 v5, 1, v{vG}")
    a.i("v_lshlrev_b32 v5, 10, v5")
    a.i("v_add_u32 v11, v10, v5")
    a.i(f"v_add_u32 v11, {4*2048+512}, v11")
    a.i(f"v_cmp_gt_u32 vcc, 2, v{vG}")
    a.i(f"s_cmp_eq_u32 s{sCH}, 0")
    a.i("s_cselect_b64 s[96:97], -1, 0")
    a.i("s_and_b64 vcc, vcc, s[96:97]")
    a.i(f"v_add_u32 v12, {4*2048}, v10")
    a.i(f"v_add_u32 v13, {4*2048}, v11")
    a.i("v_mov_b32 v14, 0x7fffffff")
    a.i("v_cndmask_b32 v12, v14, v12, vcc")
    a.i("v_cndmask_b32 v13, v14, v13, vcc")
    a.i(f"v_lshlrev_b32 v4, 3, v{vG}")
    a.i(f"v_lshrrev_b32 v5, 2, v{vR}")
    a.i("v_add_u32 v4, v4, v5")
    a.i("v_mul_u32_u24 v4, 288, v4")
    a.i(f"v_and_b32 v5, 3, v{vR}")
    a.i("v_lshlrev_b32 v5, 3, v5")
    a.i("v_add_u32 v4, v4, v5")
    a.i(f"s_lshl_b32 s{sT0}, s{sCH}, 7")
    a.i(f"s_add_u32 s{sT0}, s{sT0}, {L_WO}")
    a.i(f"v_add_u32 v15, s{sT0}, v4")
    a.vm_all()
    a.i("s_barrier")
    stamp(a, "h stores done")
    a.i(f"s_lshl_b32 s{sT0}, s{sT}, 8")
    a.i(f"s_lshl_b32 s{sT1}, s{sJ}, 2")
    a.i(f"s_add_u32 s{sT1}, s{sT1}, s{sT0}")
    a.i(f"v_mov_b32 v4, s{sT1}")
    a.i(f"v_mov_b32 v5, s{sTAG}")
    a.i(f"s_cmp_eq_u32 s{sWAVE}, 0")
    a.i("s_cbranch_scc0 L_noflag")
    a.i(f"v_cmp_eq_u32 vcc, 0, v{vLANE}")
    a.i("s_and_saveexec_b64 s[96:97], vcc")
    a.i(f"buffer_store_dword v5, v4, s[{S_WS}:{S_WS+3}], 0 offen sc1")
    a.i("s_mov_b64 exec, s[96:97]")
    a.label("L_noflag")
    WF = P
    for t in range(5):
        for ks in range(5):
            for h in range(2):
                d = WF + 20 * t + 4 * ks + 2 * h
                a.i(f"ds_read_b64_tr_b16 v[{d}:{d+1}], v15 offset:{ks*9216 + h*1152 + t*32}")
    a.i(f"s_cmp_eq_u32 s{sWAVE}, 0")
    a.i("s_cbranch_scc0 L_polled")
    a.i(f"v_min_u32 v4, 8, v{vLANE}")
    a.i("v_lshlrev_b32 v4, 2, v4")
    a.i(f"v_add_u32 v4, s{sT0}, v4")
    a.i("s_mov_b32 s63, 0")
    a.label("L_poll")
    a.i(f"buffer_load_dword v6, v4, s[{S_WS}:{S_WS+3}], 0 offen sc1")
    a.i("s_add_u32 s63, s63, 1")
    a.i("s_waitcnt vmcnt(0)")
    a.i("v_cmp_ne_u32 vcc, v6, v5")
    a.i("s_nop 4")
    a.i("s_cbranch_vccz L_pollok")
    a.i("s_sleep 1")
    a.i("s_cmp_lt_u32 s63, 0x40000")
    a.i("s_cbranch_scc1 L_poll")
    a.label("L_pollok")
    a.i(f"s_cmp_eq_u32 s{sJ}, 0")
    a.i("s_cbranch_scc0 L_polled")
    a.i(f"s_add_u32 s{sT0}, s{sT0}, 128")
    a.i(f"v_mov_b32 v4, s{sT0}")
    a.i(f"v_cmp_eq_u32 vcc, 0, v{vLANE}")
    a.i("s_and_saveexec_b64 s[96:97], vcc")
    a.i(f"buffer_store_dword v5, v4, s[{S_WS}:{S_WS+3}], 0 offen sc1")
    a.i("s_mov_b64 exec, s[96:97]")
    a.label("L_polled")
    a.i("s_barrier")
    stamp(a, "flags seen")
    F = (104, 112, 120)
    Gr = (108, 116, 124)
    a.vm = []
    for s in range(2):
        a.vmem(f"buffer_load_dwordx4 {vr(F[s])}, v10, s[{S_WS}:{S_WS+3}], 0 offen offset:{s*2048} sc1", ("h", s))
        a.vmem(f"buffer_load_dwordx4 {vr(Gr[s])}, v11, s[{S_WS}:{S_WS+3}], 0 offen offset:{s*2048} sc1", ("h", s))
    a.vmem(f"buffer_load_dwordx4 {vr(F[2])}, v12, s[{S_WS}:{S_WS+3}], 0 offen sc1", ("h", 2))
    a.vmem(f"buffer_load_dwordx4 {vr(Gr[2])}, v13, s[{S_WS}:{S_WS+3}], 0 offen sc1", ("h", 2))
    a.i("s_mov_b32 s96, 0xc038aa3b")
    a.i("s_mov_b32 s97, 0xbfb8aa3b")
    a.i("s_mov_b32 s98, 0x42700000")
    Z = 128
    for s in range(3):
        a.wait_vm_emit(("h", s))
        if s == 0:
            stamp(a, "h loaded")
            if OPT["stamps"]:
                a.i("s_mov_b32 s96, 0xc038aa3b")
                a.i("s_mov_b32 s97, 0xbfb8aa3b")
                a.i("s_mov_b32 s98, 0x42700000")
        for d in range(4):
            a.i(f"v_lshlrev_b32 v{40+2*d}, 16, v{F[s]+d}")
            a.i(f"v_and_b32 v{41+2*d}, s{sMASK}, v{F[s]+d}")
            a.i(f"v_lshlrev_b32 v{48+2*d}, 16, v{Gr[s]+d}")
            a.i(f"v_and_b32 v{49+2*d}, s{sMASK}, v{Gr[s]+d}")
        for e in range(8):
            a.i(f"v_mul_f32 v{40+e}, s96, v{40+e}")
        for e in range(8):
            a.i(f"v_mul_f32 v{48+e}, s97, v{48+e}")
        for e in range(8):
            a.i(f"v_min_f32 v{40+e}, s98, v{40+e}")
        for e in range(8):
            a.i(f"v_exp_f32 v{48+e}, v{48+e}")
        for e in range(8):
            a.i(f"v_exp_f32 v{40+e}, v{40+e}")
        for e in range(8):
            a.i(f"v_add_f32 v{56+e}, 1.0, v{40+e}")
        for e in range(8):
            a.i(f"v_fma_f32 v{56+e}, v{56+e}, v{48+e}, v{56+e}")
        for e in range(8):
            a.i(f"v_rcp_f32 v{56+e}, v{56+e}")
        for e in range(8):
            a.i(f"v_sub_f32 v{40+e}, 1.0, v{40+e}")
        for e in range(8):
            a.i(f"v_mul_f32 v{40+e}, v{40+e}, v{56+e}")
        for d in range(4):
            a.i(f"v_cvt_pk_bf16_f32 v{Z+4*s+d}, v{40+2*d}, v{41+2*d}")
    a.i(f"s_mul_i32 s{sT0}, s{sKH}, 5120")
    a.i(f"s_lshl_b32 s{sT1}, s{sCH}, 11")
    a.i(f"s_add_u32 s{sT0}, s{sT0}, s{sT1}")
    a.i(f"s_add_u32 s{sT0}, s{sT0}, {L_Z}")
    a.i(f"v_lshlrev_b32 v4, 4, v{vLANE}")
    a.i(f"v_add_u32 v5, s{sT0}, v4")
    a.i(f"ds_write_b128 v5, {vr(Z)}")
    a.i(f"ds_write_b128 v5, {vr(Z+4)} offset:1024")
    a.i(f"s_cmp_eq_u32 s{sCH}, 0")
    a.i("s_cbranch_scc0 L_noz4")
    a.i(f"ds_write_b128 v5, {vr(Z+8)} offset:4096")
    a.label("L_noz4")
    a.lg_all()
    a.i("s_barrier")
    stamp(a, "gated")
    a.i(f"s_mul_i32 s{sT0}, s{sKH}, 5120")
    a.i(f"s_add_u32 s{sT0}, s{sT0}, {L_Z}")
    a.i(f"v_add_u32 v5, s{sT0}, v4")
    ZF = 60
    for ks in range(5):
        a.i(f"ds_read_b128 {vr(ZF+4*ks)}, v5 offset:{1024*ks}")
    O = 104
    for ks in range(5):
        a.i(f"s_waitcnt lgkmcnt({4-ks})")
        for t in range(5):
            c = "0" if ks == 0 else vr(O + 4 * t)
            a.i(f"v_mfma_f32_16x16x32_bf16 {vr(O+4*t)}, {vr(WF+20*t+4*ks)}, {vr(ZF+4*ks)}, {c}")
    a.i(f"s_add_u32 s{sT0}, s{sN0}, s{sJ}")
    a.i(f"v_mul_u32_u24 v4, 9, v{vR}")
    a.i(f"v_add_u32 v4, s{sT0}, v4")
    a.i(f"s_mul_i32 s{sT1}, s{sTAU}, 143")
    a.i(f"v_cmp_gt_i32 vcc, s{sT1}, v4")
    a.i("v_lshlrev_b32 v5, 2, v4")
    a.i(f"s_lshl_b32 s{sT2}, s{sKH}, 1")
    a.i(f"s_add_u32 s{sT2}, s{sT2}, s{sPAR}")
    a.i(f"v_add_u32 v5, s{sT2}, v5")
    a.i("v_mul_u32_u24 v5, 288, v5")
    a.i(f"v_lshlrev_b32 v6, 3, v{vG}")
    a.i("v_add_u32 v5, v5, v6")
    a.i(f"s_lshl_b32 s{sT2}, s{sCH}, 7")
    a.i(f"v_add_u32 v5, s{sT2}, v5")
    a.i("v_mov_b32 v6, 0x7fffffff")
    a.i("v_cndmask_b32 v5, v5, v6, vcc")
    PK = 128
    for t in range(5):
        a.i(f"v_cvt_pk_bf16_f32 v{PK+2*t}, v{O+4*t}, v{O+4*t+1}")
        a.i(f"v_cvt_pk_bf16_f32 v{PK+2*t+1}, v{O+4*t+2}, v{O+4*t+3}")
    for t in range(5):
        a.i(f"buffer_store_dwordx2 v[{PK+2*t}:{PK+2*t+1}], v5, s[{S_OUT}:{S_OUT+3}], 0 offen offset:{32*t}")
    if OPT["stamps"]:
        a.i("s_waitcnt vmcnt(0)")


def build():
    a = Asm()
    a.raw(f"; @launch grid=(256,1,1) block=(256,1,1) lds={LDS_MAIN}")
    a.raw('.amdgcn_target "amdgcn-amd-amdhsa--gfx950"\n.text')
    a.raw(f".globl {KNAME}\n.p2align 8\n.type {KNAME},@function")
    gen_kernel(a)
    a.raw('.section .rodata,"a"')
    a.raw(kd(KNAME, 512, 256))
    return a.text()


if __name__ == "__main__":
    out = sys.argv[1] if len(sys.argv) > 1 else "m2.s"
    OPT["stamps"] = "stamps" in sys.argv
    OPT["dbg"] = "dbg" in sys.argv
    for k in sys.argv[2:]:
        OPT[k] = True
    open(out, "w").write(build())
    print("wrote", out)
```

```python
import sys
from asmlib import Asm, vr, ar, kd

KNAME = "standalone__autoregressive_conv_wavenet__speech_kernel"

XROWS = 159
XB = XROWS * 288
L_X0, L_X1, L_XS = 0, XB, 2 * XB
L_RING = 3 * XB
RSLOTS = 6
LDS_MAIN = L_RING + 4 * RSLOTS * 1024
TAPB = 82944
W_BYTES = 31 * TAPB
H_OFF = 0x100000
H_TEAM = 9 * 9 * 2048
L_SLAB, L_WO, L_Z = 0, 36864, 36864 + 49152

S_X, S_W, S_WO, S_OUT, S_WS = 16, 20, 24, 28, 32
sT, sJ, sTAU, sSEQ, sPAR, sB, sWAVE, sCH, sKH, sN0, sRING, sMASK = 36, 37, 38, 39, 40, 41, 42, 43, 44, 45, 46, 47
sI, sTAG = 48, 49
sT0, sT1, sT2, sT3 = 50, 51, 52, 53
sSOFF, sTAP, sTAP3 = 54, 55, 56
sSLOT = 57
S_ST = 64

vLANE, vR, vG = 1, 2, 3
vXB = {"0": 10, "1": 11, "s": 12}
vPB = {"0": 13, "1": 14, "s": 15}
vWD, vWP, vTR, vXA, vXW, vXD = 16, 17, 18, 19, 20, 21
vS = 24
vH0 = (28, 32, 92)
vH1 = (36, 40, 96)
vHS = (44, 48, 144)
vHT = 52
vAD = (68, 72)
vAB = (76, 80)
vAC = (84, 86)
vXA2, vXW2, vXA3, vXW3 = 88, 89, 90, 91
vHA, vHB = 100, 101
vWOA = 103
vFLG, vFLT, vFLV, vTAG = 22, 23, 9, 8
vPFA, vPFP, vPOI, vPOI2 = 0, 102, 104, 84
sC73, sPFO = 63, 100
ACC = {"P": 148, "Q": 184, "R": 220}

OPT = dict(stamps=False, dbg=False, proto="poison")
NSTAMP = [0]


def stamp(a, name, first=False):
    if not OPT["stamps"]:
        return
    k = 0 if first else NSTAMP[0]
    NSTAMP[0] = k + 1
    assert k < 16
    a.i("s_memrealtime s[96:97]")
    a.i("s_memtime s[98:99]")
    a.i("s_waitcnt lgkmcnt(0)")
    a.lg = []
    a.i(f"s_mov_b32 s{S_ST+2*k}, s96")
    a.i(f"s_mov_b32 s{S_ST+2*k+1}, s98")
    a.c(f"stamp {k}: {name}")


def stamp_flush(a):
    if not OPT["stamps"]:
        return
    n = NSTAMP[0]
    for k in range(2 * n):
        a.i(f"v_writelane_b32 v4, s{S_ST+k}, {k}")
    a.i(f"v_writelane_b32 v4, s{S_ST+31}, 31")
    a.i("s_lshl_b32 s96, s2, 7")
    a.i("s_add_u32 s96, s96, 0x800000")
    a.i(f"v_lshlrev_b32 v5, 2, v{vLANE}")
    a.i("v_add_u32 v5, s96, v5")
    a.i(f"v_cmp_gt_u32 vcc, 32, v{vLANE}")
    a.i(f"s_cmp_eq_u32 s{sWAVE}, 0")
    a.i("s_cselect_b64 s[96:97], -1, 0")
    a.i("s_and_b64 vcc, vcc, s[96:97]")
    a.i("v_mov_b32 v6, 0x7fffffff")
    a.i("v_cndmask_b32 v5, v6, v5, vcc")
    a.i(f"buffer_store_dword v4, v5, s[{S_WS}:{S_WS+3}], 0 offen")
    if OPT["dbg"]:
        for k in range(n):
            a.i(f"s_sub_u32 s96, s{S_ST+2*k}, s{S_ST}")
            a.i(f"v_writelane_b32 v4, s96, {k}")
        a.i("s_mov_b32 s96, s12")
        a.i("s_and_b32 s97, s13, 0xffff")
        a.i("s_mov_b32 s98, 256")
        a.i("s_mov_b32 s99, 0x20000")
        a.i(f"v_lshlrev_b32 v5, 2, v{vLANE}")
        a.i(f"v_cmp_gt_u32 vcc, {n}, v{vLANE}")
        a.i(f"s_cmp_eq_u32 s{sWAVE}, 0")
        a.i("s_cselect_b64 s[62:63], -1, 0")
        a.i("s_and_b64 vcc, vcc, s[62:63]")
        a.i("s_cmp_eq_u32 s2, 8")
        a.i("s_cselect_b64 s[62:63], -1, 0")
        a.i("s_and_b64 vcc, vcc, s[62:63]")
        a.i("v_cndmask_b32 v5, v6, v5, vcc")
        a.i("buffer_store_dword v4, v5, s[96:99], 0 offen")
    a.i("s_waitcnt vmcnt(0)")


def srd(a, s, base, nbytes):
    a.i(f"s_mov_b32 s{s}, s{base}")
    a.i(f"s_and_b32 s{s+1}, s{base+1}, 0xffff")
    a.i(f"s_mov_b32 s{s+2}, {nbytes}")
    a.i(f"s_mov_b32 s{s+3}, 0x20000")


def decode_wg(a, exit_label):
    a.i("s_cmp_ge_u32 s2, 256")
    a.i(f"s_cbranch_scc1 {exit_label}")
    a.i(f"s_and_b32 s{sT0}, s2, 7")
    a.i(f"s_lshl_b32 s{sT0}, s{sT0}, 5")
    a.i(f"s_lshr_b32 s{sT1}, s2, 3")
    a.i(f"s_add_u32 s{sI}, s{sT0}, s{sT1}")
    a.i(f"s_cmp_ge_u32 s{sI}, 252")
    a.i(f"s_cbranch_scc1 {exit_label}")
    a.i("s_load_dwordx4 s[4:7], s[0:1], 0")
    a.i("s_load_dwordx4 s[8:11], s[0:1], 16")
    a.i("s_load_dwordx4 s[12:15], s[0:1], 32")
    a.i(f"s_mul_i32 s{sT}, s{sI}, 7282")
    a.i(f"s_lshr_b32 s{sT}, s{sT}, 16")
    a.i(f"s_mul_i32 s{sT0}, s{sT}, 9")
    a.i(f"s_sub_u32 s{sJ}, s{sI}, s{sT0}")
    a.i(f"s_mul_i32 s{sSEQ}, s{sT}, 9363")
    a.i(f"s_lshr_b32 s{sSEQ}, s{sSEQ}, 16")
    a.i(f"s_mul_i32 s{sT0}, s{sSEQ}, 7")
    a.i(f"s_sub_u32 s{sTAU}, s{sT}, s{sT0}")
    a.i(f"s_and_b32 s{sPAR}, s{sSEQ}, 1")
    a.i(f"s_lshr_b32 s{sB}, s{sSEQ}, 1")
    a.i(f"s_mul_i32 s{sN0}, s{sTAU}, 143")
    a.i(f"s_sub_u32 s{sN0}, s{sN0}, 1")
    a.i("v_lshrrev_b32 v4, 6, v0")
    a.i(f"v_and_b32 v{vLANE}, 63, v0")
    a.i(f"v_readfirstlane_b32 s{sWAVE}, v4")
    a.i(f"v_and_b32 v{vR}, 15, v{vLANE}")
    a.i(f"v_lshrrev_b32 v{vG}, 4, v{vLANE}")
    a.i(f"s_and_b32 s{sCH}, s{sWAVE}, 1")
    a.i(f"s_lshr_b32 s{sKH}, s{sWAVE}, 1")
    a.i(f"s_mul_i32 s{sT0}, s{sB}, 1152000")


def make_srds(a):
    a.i("s_waitcnt lgkmcnt(0)")
    a.i(f"s_add_u32 s{S_X}, s4, s{sT0}")
    a.i(f"s_addc_u32 s{S_X+1}, s5, 0")
    a.i(f"s_and_b32 s{S_X+1}, s{S_X+1}, 0xffff")
    a.i(f"s_mov_b32 s{S_X+2}, 1152000")
    a.i(f"s_mov_b32 s{S_X+3}, 0x20000")
    srd(a, S_W, 6, W_BYTES)
    srd(a, S_WO, 8, 41472)
    a.i(f"s_add_u32 s{S_OUT}, s10, s{sT0}")
    a.i(f"s_addc_u32 s{S_OUT+1}, s11, 0")
    a.i(f"s_and_b32 s{S_OUT+1}, s{S_OUT+1}, 0xffff")
    a.i(f"s_mov_b32 s{S_OUT+2}, 1152000")
    a.i(f"s_mov_b32 s{S_OUT+3}, 0x20000")
    srd(a, S_WS, 14, 0x10000000)


class Step:
    def __init__(self, seg, j):
        self.seg, self.j = seg, j
        self.hasQ = not (seg in "AB" and j == 15)
        self.items = []
        if seg in ("A", "B"):
            so = 18432 if seg == "B" else 0
            self.items.append(("H0", 2 * j * TAPB + so, vWD))
            if self.hasQ:
                self.items.append(("H1", (2 * j + 1) * TAPB + so, vWD))
            self.shift = j
        else:
            self.items.append(("H0", 4 * j * TAPB, vWP))
            self.items.append(("H1", (4 * j + 1) * TAPB, vWP))
            self.shift = 2 * j

    def xkeys(self):
        ks = []
        for seq in ("0", "1", "s"):
            if seq == "1" and not self.hasQ:
                continue
            for m in range(9):
                ks.append((seq, self.seg, m - self.shift))
        return ks


STEPS = [Step("A", j) for j in range(16)] + [Step("B", j) for j in range(16)] + [Step("Pr", j) for j in range(4)]
NST = len(STEPS)


def x_addr(key):
    seq, seg, q = key
    if seg == "Pr":
        return vPB[seq], (q + 15) * 288
    return vXB[seq], (q + 15) * 288 + (64 if seg == "B" else 0)


class XWin:
    def __init__(self):
        self.pool = {"0": list(range(0, 21)), "1": list(range(21, 42)), "s": list(range(42, 63))}
        self.slot = {}
        self.last = {}
        for si, st in enumerate(STEPS):
            for k in st.xkeys():
                self.last[k] = si

    def alloc(self, key):
        s = self.pool[key[0]].pop(0)
        self.slot[key] = s
        return s * 4

    def reg(self, key):
        return self.slot[key] * 4

    def release_after(self, si):
        for k, s in list(self.slot.items()):
            if self.last[k] == si:
                self.pool[k[0]].append(s)
                del self.slot[k]


def hs_valu(h0, h1, hs):
    st = []
    for stage in range(7):
        for d in range(4):
            t = vHT + 4 * d
            st.append([f"v_lshlrev_b32 v{t}, 16, v{h0+d}", f"v_lshlrev_b32 v{t+1}, 16, v{h1+d}",
                       f"v_and_b32 v{t+2}, s{sMASK}, v{h0+d}", f"v_and_b32 v{t+3}, s{sMASK}, v{h1+d}",
                       f"v_add_f32 v{t}, v{t}, v{t+1}", f"v_add_f32 v{t+2}, v{t+2}, v{t+3}",
                       f"v_cvt_pk_bf16_f32 v{hs+d}, v{t}, v{t+2}"][stage])
    return st


def w_granule_kk(a, dst):
    a.i(f"v_lshrrev_b32 v4, 3, v{vLANE}")
    a.i("v_lshrrev_b32 v5, 2, v4")
    a.i("v_lshlrev_b32 v5, 4, v5")
    a.i("v_and_b32 v6, 1, v4")
    a.i("v_lshlrev_b32 v6, 3, v6")
    a.i("v_add_u32 v5, v5, v6")
    a.i("v_and_b32 v6, 2, v4")
    a.i("v_lshlrev_b32 v6, 1, v6")
    a.i("v_add_u32 v5, v5, v6")
    a.i(f"v_bfe_u32 v6, v{vLANE}, 1, 2")
    a.i(f"v_add_u32 v{dst}, v5, v6")


def tr_base(a, dst, sbase):
    a.i(f"v_lshrrev_b32 v4, 1, v{vG}")
    a.i("v_lshlrev_b32 v4, 9, v4")
    a.i(f"v_and_b32 v5, 1, v{vG}")
    a.i("v_lshlrev_b32 v5, 7, v5")
    a.i("v_add_u32 v4, v4, v5")
    a.i(f"v_lshrrev_b32 v5, 2, v{vR}")
    a.i("v_lshlrev_b32 v5, 5, v5")
    a.i("v_add_u32 v4, v4, v5")
    a.i(f"v_and_b32 v5, 3, v{vR}")
    a.i("v_lshlrev_b32 v5, 3, v5")
    a.i("v_add_u32 v4, v4, v5")
    a.i(f"v_add_u32 v{dst}, s{sbase}, v4")


def typed(f, t):
    f.t = t
    return f


def T(fs, t):
    return [typed(f, t) for f in fs]


def emit_gaps(mf, qmem, qval):
    qmem, qval = list(qmem), list(qval)
    n = len(mf)
    for g, m in enumerate(mf):
        m()
        left = n - g
        nvec = ns = 0
        took = False
        while qmem:
            t = qmem[0].t
            if t == "s":
                if ns >= 3:
                    break
                qmem.pop(0)()
                ns += 1
            elif t == "m":
                if took:
                    break
                qmem.pop(0)()
                took = True
            elif t == "d":
                if nvec:
                    break
                qmem.pop(0)()
                nvec = 2
                break
            else:
                nl = sum(1 for f in qmem if f.t != "s")
                if nvec >= 2 or (nvec >= 1 and nl <= left - 1):
                    break
                qmem.pop(0)()
                nvec += 1
        while qval and nvec < 2:
            qval.pop(0)()
            nvec += 1
    for f in qmem + qval:
        f()


def srd_x(a):
    a.i("s_waitcnt lgkmcnt(0)")
    a.i(f"s_add_u32 s{S_X}, s4, s{sT0}")
    a.i(f"s_addc_u32 s{S_X+1}, s5, 0")
    a.i(f"s_and_b32 s{S_X+1}, s{S_X+1}, 0xffff")
    a.i(f"s_mov_b32 s{S_X+2}, 1152000")
    a.i(f"s_mov_b32 s{S_X+3}, 0x20000")


def srd_rest(a):
    srd(a, S_WO, 8, 41472)
    a.i(f"s_add_u32 s{S_OUT}, s10, s{sT0}")
    a.i(f"s_addc_u32 s{S_OUT+1}, s11, 0")
    a.i(f"s_and_b32 s{S_OUT+1}, s{S_OUT+1}, 0xffff")
    a.i(f"s_mov_b32 s{S_OUT+2}, 1152000")
    a.i(f"s_mov_b32 s{S_OUT+3}, 0x20000")


def SW(fn):
    return typed(fn, "s")


def gen_kernel(a):
    a.label(KNAME)
    stamp(a, "entry", first=True)
    decode_wg(a, "L_end")
    a.i(f"s_mov_b32 s{sC73}, 73728")
    a.i(f"v_mul_u32_u24 v4, 3641, v{vLANE}")
    a.i("v_lshrrev_b32 v4, 16, v4")
    a.i("v_mul_u32_u24 v6, 18, v4")
    a.i(f"v_sub_u32 v6, v{vLANE}, v6")
    a.i("v_mul_u32_u24 v4, 1152, v4")
    a.i("v_lshlrev_b32 v6, 4, v6")
    a.i("v_add_u32 v4, v4, v6")
    a.i(f"s_sub_u32 s{sT1}, s{sN0}, 15")
    a.i(f"s_mul_i32 s{sT1}, s{sT1}, 1152")
    a.i(f"s_mul_i32 s{sT2}, s{sPAR}, 288")
    a.i(f"s_add_u32 s{sT1}, s{sT1}, s{sT2}")
    a.i(f"v_add_u32 v147, s{sT1}, v4")
    a.i(f"s_mul_i32 s{sT3}, s{sWAVE}, 9")
    a.i(f"v_lshrrev_b32 v8, 2, v{vLANE}")
    a.i("v_min_u32 v8, 8, v8")
    a.i(f"v_add_u32 v8, s{sT3}, v8")
    a.i("v_lshrrev_b32 v9, 1, v8")
    a.i(f"s_mul_i32 s{sT2}, s{sJ}, 18")
    a.i(f"v_add_u32 v9, s{sT2}, v9")
    a.i("v_mul_u32_u24 v9, 1152, v9")
    a.i("v_and_b32 v8, 1, v8")
    a.i("v_mul_u32_u24 v8, 576, v8")
    a.i("v_add_u32 v9, v9, v8")
    a.i(f"v_and_b32 v8, 3, v{vLANE}")
    a.i("v_mul_u32_u24 v8, 92, v8")
    a.i("v_add_u32 v9, v9, v8")
    a.i(f"v_add_u32 v22, s{sT1}, v9")
    a.i("v_and_b32 v22, -4, v22")
    srd_x(a)
    if not OPT.get("noxpf"):
        a.vmem(f"buffer_load_dword v68, v22, s[{S_X}:{S_X+3}], 0 offen", "pf")
    srd(a, S_W, 6, W_BYTES)
    a.i(f"s_lshl_b32 s{sT2}, s{sI}, 2")
    a.i(f"s_add_u32 s{sT2}, s{sT2}, s{sWAVE}")
    a.i(f"s_mul_i32 s{sT2}, s{sT2}, 3")
    a.i(f"v_min_u32 v4, 2, v{vLANE}")
    a.i(f"v_add_u32 v4, s{sT2}, v4")
    a.i("v_mul_u32_u24 v5, 3641, v4")
    a.i("v_lshrrev_b32 v5, 20, v5")
    a.i("v_mul_u32_u24 v6, 288, v5")
    a.i("v_sub_u32 v6, v4, v6")
    a.i(f"v_mul_u32_u24 v23, {TAPB}, v5")
    a.i("v_cmp_le_u32 vcc, 144, v6")
    a.i("v_lshlrev_b32 v7, 7, v6")
    a.i("v_add_u32 v23, v23, v7")
    a.i(f"v_add_u32 v7, {36864 - 144*128}, v23")
    a.i("v_cndmask_b32 v23, v23, v7, vcc")
    a.i("v_cmp_le_u32 vcc, 8, v5")
    a.i("v_mov_b32 v7, 0x7fffffff")
    a.i("v_mul_u32_u24 v5, 14564, v4")
    a.i(f"v_cndmask_b32 v{vPFA}, v23, v7, vcc")
    a.i("v_lshrrev_b32 v5, 20, v5")
    a.i("v_mul_u32_u24 v6, 72, v5")
    a.i("v_sub_u32 v6, v4, v6")
    a.i("v_lshlrev_b32 v6, 7, v6")
    a.i(f"v_mul_u32_u24 v5, {TAPB}, v5")
    a.i(f"v_add3_u32 v{vPFP}, v5, v6, s{sC73}")
    def w_pf(reg, soff, dst=vXD):
        return [SW(lambda: a.i(f"s_mov_b32 s{sPFO}, {soff}")),
                typed(lambda: a.vmem(f"buffer_load_dword v{dst}, v{reg}, s[{S_W}:{S_W+3}], s{sPFO} offen", "pf"), "d")]
    if not OPT.get("nowpf"):
        for f in w_pf(vPFA, 0, 69) + w_pf(vPFA, 8 * TAPB, 69):
            f()
    srd(a, S_WS, 14, 0x10000000)
    a.i(f"s_lshl_b32 s{sT2}, s{sT}, 8")
    a.i(f"s_add_u32 s{sT2}, s{sT2}, 128")
    a.i(f"s_load_dword s{sTAG}, s[14:15], s{sT2}")
    a.i(f"s_mul_i32 s{sT3}, s{sT}, {H_TEAM}")
    a.i(f"s_lshl_b32 s{sT1}, s{sJ}, 11")
    a.i(f"s_add_u32 s{sT3}, s{sT3}, s{sT1}")
    a.i(f"s_lshl_b32 s{sT1}, s{sKH}, 10")
    a.i(f"s_add_u32 s{sT3}, s{sT3}, s{sT1}")
    a.i(f"s_lshl_b32 s{sT1}, s{sCH}, 9")
    a.i(f"s_add_u32 s{sT3}, s{sT3}, s{sT1}")
    a.i(f"s_add_u32 s{sT3}, s{sT3}, {H_OFF}")
    a.i(f"v_and_b32 v4, 1, v{vG}")
    a.i("v_mul_u32_u24 v5, 18432, v4")
    a.i(f"v_lshrrev_b32 v6, 1, v{vG}")
    a.i("v_lshlrev_b32 v6, 8, v6")
    a.i(f"v_lshlrev_b32 v7, 4, v{vR}")
    a.i("v_add3_u32 v5, v5, v6, v7")
    a.i(f"v_add_u32 v{vHA}, s{sT3}, v5")
    a.i("v_cmp_eq_u32 vcc, 1, v4")
    a.i("v_mov_b32 v6, 0x7fffffff")
    a.i("s_nop 0")
    a.i(f"v_cndmask_b32 v{vHB}, v{vHA}, v6, vcc")

    for d in range(4):
        a.i(f"v_mov_b32 v{vPOI2+d}, -1")
    srd_rest(a)
    w_granule_kk(a, 5)
    a.i(f"v_and_b32 v6, 1, v{vLANE}")
    a.i("v_lshlrev_b32 v6, 4, v6")
    a.i(f"s_lshl_b32 s{sT2}, s{sJ}, 6")
    a.i(f"s_lshl_b32 s{sT1}, s{sCH}, 5")
    a.i(f"s_add_u32 s{sT2}, s{sT2}, s{sT1}")
    a.i(f"v_add_u32 v6, s{sT2}, v6")
    a.i("v_mul_u32_u24 v7, 576, v5")
    a.i("v_add_u32 v7, v7, v6")
    a.i(f"s_mul_i32 s{sT1}, s{sKH}, 36864")
    a.i(f"v_add_u32 v{vWD}, s{sT1}, v7")
    a.i("v_and_b32 v7, 15, v5")
    a.i("v_mul_u32_u24 v7, 576, v7")
    a.i("v_lshrrev_b32 v8, 4, v5")
    a.i(f"v_mul_u32_u24 v8, {2*TAPB}, v8")
    a.i("v_add_u32 v7, v7, v8")
    a.i("v_add_u32 v7, v7, v6")
    a.i(f"s_mul_i32 s{sT1}, s{sKH}, {16*TAPB}")
    a.i(f"s_add_u32 s{sT1}, s{sT1}, {128*576}")
    a.i(f"v_add_u32 v{vWP}, s{sT1}, v7")
    a.i(f"s_mul_i32 s{sRING}, s{sWAVE}, {RSLOTS*1024}")
    a.i(f"s_add_u32 s{sRING}, s{sRING}, {L_RING}")
    for k in range(RSLOTS):
        a.i(f"s_add_u32 s{sSLOT+k}, s{sRING}, {k*1024}")
    a.i(f"s_mov_b32 s{sTAP}, {TAPB}")
    a.i(f"s_mov_b32 s{sTAP3}, {3*TAPB}")
    a.i(f"s_mov_b32 s{sMASK}, 0xffff0000")

    items = []
    for si, st in enumerate(STEPS):
        for it in st.items:
            items.append((si,) + it)
    slot_of = {(si, nm): k % RSLOTS for k, (si, nm, _, _) in enumerate(items)}
    cur_soff = [None]

    def dma_instrs(si):
        out = []
        for nm, so, vreg in STEPS[si].items:
            sl = slot_of[(si, nm)]

            def f_soff(so=so):
                prev = cur_soff[0]
                if prev is not None and so - prev == TAPB:
                    a.i(f"s_add_u32 s{sSOFF}, s{sSOFF}, s{sTAP}")
                elif prev is not None and so - prev == 3 * TAPB:
                    a.i(f"s_add_u32 s{sSOFF}, s{sSOFF}, s{sTAP3}")
                else:
                    a.i(f"s_mov_b32 s{sSOFF}, {so}")
                cur_soff[0] = so
            out.append(lambda sl=sl: a.i(f"s_mov_b32 m0, s{sSLOT+sl}"))
            out.append(f_soff)
            out.append(lambda vreg=vreg, si=si: a.vmem(
                f"buffer_load_dwordx4 v{vreg}, s[{S_W}:{S_W+3}], s{sSOFF} offen lds", ("w", si)))
        return out

    def dma_typed(si):
        return [typed(f, "d" if k % 3 == 2 else "s") for k, f in enumerate(dma_instrs(si))]

    for f in dma_instrs(0):
        f()
    a.i(f"s_mul_i32 s{sT1}, s{sWAVE}, {3*1152}")
    a.i(f"v_add_u32 v{vXD}, s{sT1}, v147")
    a.i(f"v_add_u32 v8, 576, v{vXD}")
    a.i(f"v_add_u32 v9, {156*1152}, v147")
    a.i(f"v_add_u32 v7, {156*1152+576}, v147")
    a.i(f"s_mul_i32 s{sT2}, s{sWAVE}, 864")
    a.i("s_mov_b32 exec_lo, -1")
    a.i("s_mov_b32 exec_hi, 0x3fffff")
    for sel in range(2):
        base = L_X1 if sel else L_X0
        reg = 8 if sel else vXD
        for i in range(14):
            if i < 13:
                a.i(f"s_add_u32 m0, s{sT2}, {base + 3456*i}")
                a.i(f"v_add_u32 v{reg}, 13824, v{reg}" if i else "s_nop 0")
                a.vmem(f"buffer_load_dwordx4 v{reg}, s[{S_X}:{S_X+3}], 0 offen lds", "x")
            else:
                a.i(f"s_mov_b32 m0, {base + 156*288}")
                a.i("s_nop 0")
                a.vmem(f"buffer_load_dwordx4 v{7 if sel else 9}, s[{S_X}:{S_X+3}], 0 offen lds", "x")
    a.i("s_mov_b64 exec, -1")
    for si in (1, 2):
        for f in dma_instrs(si):
            f()
    if OPT.get("pfpro"):
        for so in (16, 24):
            for f in w_pf(vPFA, so * TAPB):
                f()
        for so in (0, 8, 16, 24):
            for f in w_pf(vPFA, so * TAPB + 18432):
                f()
        for f in w_pf(vPFP, 0):
            f()
    a.i(f"s_lshl_b32 s{sT0}, s{sI}, 2")
    a.i(f"s_add_u32 s{sT0}, s{sT0}, s{sWAVE}")
    a.i(f"s_mul_i32 s{sT1}, s{sT0}, 203")
    a.i(f"s_lshr_b32 s{sT1}, s{sT1}, 16")
    a.i(f"s_mul_i32 s{sT1}, s{sT1}, 324")
    a.i(f"s_sub_u32 s{sT0}, s{sT0}, s{sT1}")
    a.i(f"s_lshl_b32 s{sT0}, s{sT0}, 7")
    a.i(f"v_mov_b32 v4, s{sT0}")
    a.vmem(f"buffer_load_dword v{vXD}, v4, s[{S_WO}:{S_WO+3}], 0 offen", "pf2")
    a.i(f"v_mul_u32_u24 v4, 2592, v{vR}")
    a.i(f"v_lshlrev_b32 v5, 4, v{vG}")
    a.i("v_add_u32 v5, v4, v5")
    a.i(f"s_lshl_b32 s{sT0}, s{sKH}, 7")
    a.i(f"v_add_u32 v{vXB['0']}, s{sT0}, v5")
    a.i(f"v_add_u32 v{vXB['1']}, {L_X1}, v{vXB['0']}")
    a.i(f"v_add_u32 v{vXB['s']}, {L_XS}, v{vXB['0']}")
    a.i(f"v_and_b32 v5, 1, v{vG}")
    a.i("v_lshlrev_b32 v5, 4, v5")
    a.i("v_add_u32 v5, v4, v5")
    a.i(f"v_lshrrev_b32 v6, 1, v{vG}")
    a.i("v_mul_u32_u24 v6, 288, v6")
    a.i("v_sub_u32 v5, v5, v6")
    a.i(f"s_mul_i32 s{sT0}, s{sKH}, {8*288}")
    a.i(f"s_sub_u32 s{sT0}, 256, s{sT0}")
    a.i(f"v_add_u32 v{vPB['0']}, s{sT0}, v5")
    a.i(f"v_add_u32 v{vPB['1']}, {L_X1}, v{vPB['0']}")
    a.i(f"v_add_u32 v{vPB['s']}, {L_XS}, v{vPB['0']}")
    tr_base(a, vTR, sRING)
    a.i(f"v_mul_u32_u24 v4, 288, v{vR}")
    a.i(f"v_lshrrev_b32 v5, 1, v{vG}")
    a.i(f"v_mul_u32_u24 v5, {XB}, v5")
    a.i(f"v_and_b32 v6, 1, v{vG}")
    a.i("v_lshlrev_b32 v6, 4, v6")
    a.i("v_add3_u32 v5, v4, v5, v6")
    a.i(f"v_lshlrev_b32 v6, 3, v{vG}")
    a.i("v_add_u32 v6, v4, v6")
    a.i(f"v_add_u32 v6, {L_XS}, v6")
    a.i(f"s_lshl_b32 s{sT0}, s{sKH}, 7")
    a.i(f"s_lshl_b32 s{sT1}, s{sCH}, 5")
    a.i(f"s_add_u32 s{sT0}, s{sT0}, s{sT1}")
    a.i(f"v_add_u32 v{vXA}, s{sT0}, v5")
    a.i(f"v_add_u32 v{vXW}, s{sT0}, v6")
    a.i(f"s_mul_i32 s{sT0}, s{sWAVE}, {16*288}")
    a.i(f"s_add_u32 s{sT0}, s{sT0}, 256")
    a.i(f"v_add_u32 v{vXA2}, s{sT0}, v5")
    a.i(f"v_add_u32 v{vXW2}, s{sT0}, v6")
    a.i(f"s_lshl_b32 s{sT0}, s{sWAVE}, 4")
    a.i(f"s_add_u32 s{sT0}, s{sT0}, 128")
    a.i(f"s_min_u32 s{sT0}, s{sT0}, 143")
    a.i(f"s_mul_i32 s{sT0}, s{sT0}, 288")
    a.i(f"s_add_u32 s{sT0}, s{sT0}, 256")
    a.i(f"v_add_u32 v{vXA3}, s{sT0}, v5")
    a.i(f"v_add_u32 v{vXW3}, s{sT0}, v6")
    a.i(f"v_lshrrev_b32 v4, 3, v{vR}")
    a.i(f"v_and_b32 v5, 1, v{vG}")
    a.i("v_cmp_eq_u32 vcc, v4, v5")
    a.i(f"v_and_b32 v4, 1, v{vR}")
    a.i("v_lshlrev_b32 v4, 4, v4")
    a.i("v_mov_b32 v5, 0x3f80")
    a.i("v_lshlrev_b32 v4, v4, v5")
    a.i("v_cndmask_b32 v4, 0, v4, vcc")
    a.i(f"v_bfe_u32 v5, v{vR}, 1, 2")
    for d in range(4):
        a.i(f"v_cmp_eq_u32 vcc, {d}, v5")
        a.i("s_nop 1")
        a.i(f"v_cndmask_b32 v{vS+d}, 0, v4, vcc")
    a.i(f"s_lshl_b32 s{sT0}, s{sT}, 8")
    a.i(f"s_lshl_b32 s{sT1}, s{sJ}, 2")
    a.i(f"s_add_u32 s{sT1}, s{sT1}, s{sT0}")
    a.i(f"v_mov_b32 v4, s{sT1}")
    a.i(f"v_or_b32 v5, s{sWAVE}, v{vLANE}")
    a.i("v_cmp_eq_u32 vcc, 0, v5")
    a.i("v_mov_b32 v6, 0x7fffffff")
    a.i(f"v_min_u32 v7, 8, v{vLANE}")
    a.i(f"v_cndmask_b32 v{vFLG}, v6, v4, vcc")
    a.i("v_lshlrev_b32 v7, 2, v7")
    a.i(f"v_add_u32 v{vFLT}, s{sT0}, v7")

    def blocks(seg):
        if seg in ("A", "B"):
            so = 64 if seg == "B" else 0
            return [(vXA, vXW, min(16 * rb, 143) * 288 + so) for rb in range(10)]
        return [(vXA2, vXW2, 0), (vXA2, vXW2, 64 * 288), (vXA3, vXW3, 0)]

    def ad_read(bi, blk):
        ra, _, imm = blk
        return lambda: a.lds(f"ds_read_b128 {vr(vAB[bi % 2])}, v{ra} offset:{imm}", ("ab", bi % 2))

    def ad_mfma(bi):
        def f():
            a.wait_lg_emit(("ab", bi % 2))
            a.i(f"v_mfma_f32_16x16x32_bf16 {vr(vAD[bi % 2])}, {vr(vS)}, {vr(vAB[bi % 2])}, 0")
        return f

    def ad_fin(bi, blk):
        _, wa, imm = blk
        d, c = vAD[bi % 2], vAC[bi % 2]
        return [lambda: a.i(f"v_cvt_pk_bf16_f32 v{c}, v{d}, v{d+1}"),
                lambda: a.i(f"v_cvt_pk_bf16_f32 v{c+1}, v{d+2}, v{d+3}"),
                lambda: a.lds(f"ds_write_b64 v{wa}, v[{c}:{c+1}] offset:{imm}", "xw")]

    xw = XWin()

    def x_read(key):
        def f():
            reg, imm = x_addr(key)
            d = xw.alloc(key)
            a.lds(f"ds_read_b128 {ar(d)}, v{reg} offset:{imm}", ("x", key))
        return f

    def tr_reads(si):
        out = []
        b = si % 3
        for nm, _, _ in STEPS[si].items:
            sl = slot_of[(si, nm)]
            d = (vH0 if nm == "H0" else vH1)[b]
            for h in range(2):
                out.append(lambda d=d, h=h, sl=sl, si=si: a.lds(
                    f"ds_read_b64_tr_b16 v[{d+2*h}:{d+2*h+1}], v{vTR} offset:{sl*1024 + h*256}", ("tr", si)))
        return out

    def hs_ops(si):
        if not STEPS[si].hasQ:
            return []
        return [lambda s=s: a.i(s) for s in hs_valu(vH0[si % 3], vH1[si % 3], vHS[si % 3])]

    def mf_list(si, groups):
        st = STEPS[si]
        out = []
        for grp in groups:
            seq = {"P": "0", "Q": "1", "R": "s"}[grp]
            if grp == "Q" and not st.hasQ:
                continue
            wreg = {"P": vH0[si % 3], "Q": vH1[si % 3], "R": vHS[si % 3] if st.hasQ else vH0[si % 3]}[grp]
            for m in range(9):
                key = (seq, st.seg, m - st.shift)
                acc = ACC[grp] + 4 * m
                c = "0" if si == 0 else vr(acc)
                out.append(lambda key=key, acc=acc, wreg=wreg, c=c: a.i(
                    f"v_mfma_f32_16x16x32_bf16 {vr(acc)}, {vr(wreg)}, {ar(xw.reg(key))}, {c}"))
        return out

    stamp(a, "issued")
    a.wait_vm_emit(("w", 0))
    for f in tr_reads(0):
        f()
    a.wait_vm_emit("x")
    a.i("s_waitcnt lgkmcnt(0)")
    a.lg = []
    for f in dma_instrs(3):
        f()

    a.i("s_barrier")
    stamp(a, "x landed")
    a.i(f"s_mul_i32 s{sTAG}, s{sTAG}, 1664525")
    a.i(f"s_add_u32 s{sTAG}, s{sTAG}, 1013904223")
    loaded = set()

    def new_x(si, seqs):
        out = []
        for k in STEPS[si].xkeys():
            if k not in loaded and k[0] in seqs:
                loaded.add(k)
                out.append(typed(x_read(k), "l"))
        return out

    for f in new_x(0, "01"):
        f()
    a.i(f"v_mov_b32 v{vTAG}, s{sTAG}")

    TB, TD = 104, ACC["R"]
    bl = blocks("A")
    q = []
    for bi, (ra, wa, imm) in enumerate(bl):
        q.append(typed(lambda bi=bi, ra=ra, imm=imm: a.lds(f"ds_read_b128 {vr(TB+4*bi)}, v{ra} offset:{imm}", ("pb", bi)), "l"))
    q = [SW(lambda: a.wait_vm_emit(("w", 1)))] + T(tr_reads(1), "l") + q
    q += new_x(1, "01")
    q.append(SW(lambda: a.wait_vm_emit(("w", 2))))
    q += T(tr_reads(2), "l")
    for bi in range(10):
        def f(bi=bi):
            a.wait_lg_emit(("pb", bi))
            d = TD + 4 * bi if bi < 9 else vAD[0]
            a.i(f"v_mfma_f32_16x16x32_bf16 {vr(d)}, {vr(vS)}, {vr(TB+4*bi)}, 0")
        q.append(typed(f, "m"))
    stamp(a, "step 0")
    a.wait_lg_emit([("x", k) for k in STEPS[0].xkeys()] + [("tr", 0)])
    emit_gaps(mf_list(0, "PQ"), q, hs_ops(0))
    if OPT.get("fb"): stamp(a, "PQ0 done")
    fin = []
    for bi, (ra, wa, imm) in enumerate(bl):
        d = TD + 4 * bi if bi < 9 else vAD[0]
        fin.append(lambda d=d: a.i(f"v_cvt_pk_bf16_f32 v{d}, v{d}, v{d+1}"))
        fin.append(lambda d=d: a.i(f"v_cvt_pk_bf16_f32 v{d+1}, v{d+2}, v{d+3}"))
        fin.append(lambda d=d, wa=wa, imm=imm: a.lds(f"ds_write_b64 v{wa}, v[{d}:{d+1}] offset:{imm}", "xw"))
    a.wait_lg_emit([("x", k) for k in STEPS[1].xkeys()] + [("tr", 1)])
    q = dma_typed(4) + ([] if OPT.get("nowpf") or OPT.get("pfpro") else w_pf(vPFA, 16 * TAPB)) + new_x(2, "01")
    emit_gaps(mf_list(1, "PQ"), q, fin)
    if OPT.get("fb"): stamp(a, "PQ1 done")
    a.lg_all()
    a.i("s_barrier")
    if OPT.get("fb"): stamp(a, "bar")
    q = new_x(0, "s") + new_x(1, "s") + new_x(2, "s")
    q += dma_typed(5)
    q.append(SW(lambda: a.wait_vm_emit(("w", 3))))
    q += T(tr_reads(3), "l")
    h12 = hs_ops(1) + hs_ops(2)
    emit_gaps(mf_list(2, "PQ"), q, h12[:36])
    if OPT.get("fb"): stamp(a, "PQ2 done")
    q = new_x(3, "01s")
    q.append(SW(lambda: a.wait_vm_emit(("w", 4))))
    q += T(tr_reads(4), "l")
    q.append(SW(lambda: a.wait_lg_emit(("tr", 3))))
    q += dma_typed(6)
    a.wait_lg_emit([("x", k) for s_ in range(3) for k in STEPS[s_].xkeys() if k[0] == "s"])
    emit_gaps(mf_list(0, "R") + mf_list(1, "R") + mf_list(2, "R"), q, h12[36:] + hs_ops(3))
    for s_ in range(3):
        xw.release_after(s_)
    if OPT.get("fb"): stamp(a, "R012 done")

    extra = {si: [] for si in range(NST)}
    for s0, nxt in ((0, 16), (16, 32)):
        ks = STEPS[nxt].xkeys()
        raw = [k for k in ks if k[0] != "s"]
        sm = [k for k in ks if k[0] == "s"]
        for n, k in enumerate(raw):
            extra[s0 + 5 + (n * 10) // len(raw)].append(k)
        for n, k in enumerate(sm):
            extra[s0 + 13 + n // 3].append(k)
    all_extra = {e for ee in extra.values() for e in ee}
    barrier_at = {13, 29}
    adjobs = {}
    for seg, first_step in (("B", 3), ("Pr", 18)):
        for bi, blk in enumerate(blocks(seg)):
            adjobs.setdefault(first_step + (bi * 9) // 10, []).append((bi, blk))

    POI_AT = list(OPT.get("poi", (6, 10, 14, 18, 22)))
    FLAG_AT = OPT.get("flagat", (29,))[0]
    FLAGLD_AT = OPT.get("flagld", (33,))[0]
    assert FLAG_AT in barrier_at and max(POI_AT) + 3 <= FLAG_AT
    PF_AT = {4: (vPFA, 24 * TAPB), 8: (vPFA, 18432), 12: (vPFA, 8 * TAPB + 18432), 16: (vPFA, 16 * TAPB + 18432),
             20: (vPFA, 24 * TAPB + 18432), 24: (vPFP, 0)}
    for d in range(4):
        a.i(f"v_mov_b32 v{vPOI+d}, -1")

    def wo_dma():
        out = []
        for k in range(11):
            if k % 4 == 0:
                out.append(SW(lambda k=k: a.i(f"s_add_u32 m0, s{sT3}, {k*1024}")))
                out.append(SW(lambda k=k: a.i(f"s_add_u32 s{sT2}, s{sT1}, {k*1024}")))
            out.append(typed(lambda k=k: a.vmem(
                f"buffer_load_dwordx4 v{vWOA}, s[{S_WO}:{S_WO+3}], s{sT2} offen offset:{(k % 4)*1024} lds", "wo"), "d"))
        return out

    for si in range(3, NST):
        st = STEPS[si]
        if si in OPT.get("stamp_steps", (4, 16, 32)):
            stamp(a, f"step {si}")
        mem = []
        if si in barrier_at:
            b1 = SW(lambda: a.lg_all()); b1.isbar = True
            b2 = SW(lambda: a.i("s_barrier")); b2.isbar = True
            mem += [b1, b2]
        prev = adjobs.get(si - 1, [])
        cur = adjobs.get(si, [])
        mem += [typed(ad_mfma(bi), "m") for bi, blk in prev]
        if si + 2 < NST:
            mem.append(SW(lambda n=si + 2: a.wait_vm_emit(("w", n))))
            if not OPT.get("notr"):
                mem += T(tr_reads(si + 2), "l")
        if si + 1 < NST:
            for k in STEPS[si + 1].xkeys():
                if k not in loaded and k not in all_extra:
                    loaded.add(k)
                    mem.append(typed(x_read(k), "l"))
        for k in extra[si]:
            if k not in loaded:
                loaded.add(k)
                mem.append(typed(x_read(k), "l"))
        if si + 4 < NST:
            mem += dma_typed(si + 4)
        if si in PF_AT and not OPT.get("nowpf") and not OPT.get("pfpro"):
            mem += w_pf(*PF_AT[si])
        if si in POI_AT and not OPT.get("nopoison"):
            m = 2 * POI_AT.index(si)
            mem.append(SW(lambda m=m: a.i(f"s_mov_b32 s{sT1}, {m*18432}")))
            mem.append(typed(lambda m=m: a.vmem(
                f"buffer_store_dwordx4 v[{vPOI}:{vPOI+3}], v{vHB if m == 8 else vHA}, s[{S_WS}:{S_WS+3}], s{sT1} offen sc1", "poison"), "d"))
        if si == FLAG_AT:
            mem.append(typed(lambda: a.vmem(
                f"buffer_store_dword v{vTAG}, v{vFLG}, s[{S_WS}:{S_WS+3}], 0 offen sc1", "flagst"), "d"))
        if si == FLAGLD_AT:
            mem.append(typed(lambda: a.vmem(
                f"buffer_load_dword v{vFLV}, v{vFLT}, s[{S_WS}:{S_WS+3}], 0 offen sc1", "flagld"), "d"))
        hv = hs_ops(si + 1) if si + 1 < NST else []
        adv, writes = [], []
        for bi, blk in prev:
            c1, c2, w = ad_fin(bi, blk)
            adv += [c1, c2]
            writes.append(w)
        mem += [typed(ad_read(bi, blk), "l") for bi, blk in cur]
        if si == NST - 2:
            a.i(f"s_mul_i32 s{sT1}, s{sWAVE}, 11264")
            a.i(f"s_add_u32 s{sT3}, s{sT1}, {L_WO}")
            a.i(f"v_lshlrev_b32 v{vWOA}, 4, v{vLANE}")
        if si == NST - 1:
            mem = [SW(lambda: a.i("s_barrier"))] + wo_dma()
        val = hv[:10] + adv + writes + hv[10:]
        if OPT.get("noval"): val = adv + writes
        if OPT.get("nodma"): mem = [f for f in mem if f.t != "d"]
        if OPT.get("nolds"): keep_x = True
        if OPT.get("nobar"): mem = [f for f in mem if not getattr(f, "isbar", False)]
        need = [("x", k) for k in st.xkeys()] + [("tr", si), ("tr", si + 1)]
        a.wait_lg_emit(need)
        if si == NST - 1:
            a.lg_all()
        emit_gaps(mf_list(si, "PQR"), mem, val)
        xw.release_after(si)

    stamp(a, "loop end")
    gen_tail(a)
    stamp(a, "done")
    stamp_flush(a)
    a.label("L_end")
    a.i("s_endpgm")


def gen_tail(a):
    P, Q, R = ACC["P"], ACC["Q"], ACC["R"]
    S = 104

    def pk(d, x, y, neg=False):
        a.i(f"v_pk_add_f32 v[{d}:{d+1}], v[{x}:{x+1}], v[{y}:{y+1}]" + (" neg_lo:[0,1] neg_hi:[0,1]" if neg else ""))

    def y0(dst):
        for m in range(1, 9):
            for d in (0, 2):
                pk(dst + 4 * m + d, P + 4 * m + d, Q + 4 * m - 4 + d)
        for d in range(4):
            if dst != P:
                a.i(f"v_mov_b32 v{dst+d}, v{P+d}")
        if dst != P:
            a.i("s_nop 1")
        for d in range(4):
            a.i(f"v_add_f32_dpp v{dst+d}, v{Q+32+d}, v{P+d} row_shr:1 row_mask:0xf bank_mask:0xf")

    def y1():
        for m in range(9):
            for d in (0, 2):
                pk(R + 4 * m + d, R + 4 * m + d, P + 4 * m + d, True)
        for m in range(9):
            for d in (0, 2):
                pk(R + 4 * m + d, R + 4 * m + d, Q + 4 * m + d, True)

    a.wait_vm_emit("flagld")
    a.i(f"v_cmp_ne_u32 vcc, v{vFLV}, v{vTAG}")
    a.i(f"v_lshlrev_b32 v4, 4, v{vLANE}")
    a.i(f"s_mul_i32 s{sT0}, s{sWAVE}, 9216")
    a.i(f"v_add_u32 v5, s{sT0}, v4")
    a.i(f"s_xor_b32 s{sT1}, s{sWAVE}, 2")
    a.i("s_cbranch_vccz L_flagok")
    a.i("s_mov_b32 s63, 0")
    a.label("L_flagpoll")
    a.i(f"buffer_load_dword v{vFLV}, v{vFLT}, s[{S_WS}:{S_WS+3}], 0 offen sc1")
    a.i("s_add_u32 s63, s63, 1")
    a.i("s_waitcnt vmcnt(0)")
    a.i(f"v_cmp_ne_u32 vcc, v{vFLV}, v{vTAG}")
    a.i("s_sleep 1")
    a.i("s_nop 3")
    a.i("s_cbranch_vccz L_flagok")
    a.i("s_cmp_lt_u32 s63, 0x40000")
    a.i("s_cbranch_scc1 L_flagpoll")
    a.label("L_flagok")
    a.i(f"s_mul_i32 s{sT1}, s{sT1}, 9216")
    a.i(f"v_add_u32 v6, s{sT1}, v4")
    a.i(f"s_cmp_eq_u32 s{sKH}, 0")
    a.i("s_cbranch_scc0 L_red1")
    for kh in range(2):
        if kh == 0:
            y1()
            send, keep = R, P
        else:
            a.label("L_red1")
            y0(S)
            send, keep = S, R
        for m in range(9):
            a.i(f"ds_write_b128 v5, {vr(send+4*m)} offset:{L_SLAB + 1024*m}")
        if kh == 0:
            y0(P)
        else:
            y1()
        a.i("s_waitcnt lgkmcnt(0)")
        a.i("s_barrier")
        for m in range(9):
            a.i(f"ds_read_b128 {vr(Q+4*m)}, v6 offset:{L_SLAB + 1024*m}")
        for m in range(9):
            a.i(f"s_waitcnt lgkmcnt({8-m})")
            pk(P + 4 * m, keep + 4 * m, Q + 4 * m)
            pk(P + 4 * m + 2, keep + 4 * m + 2, Q + 4 * m + 2)
            a.i(f"v_cvt_pk_bf16_f32 v{S+2*m}, v{P+4*m}, v{P+4*m+1}")
            a.i(f"v_cvt_pk_bf16_f32 v{S+2*m+1}, v{P+4*m+2}, v{P+4*m+3}")
        if kh == 0:
            a.i("s_branch L_red2")
    a.label("L_red2")
    a.i(f"v_mov_b32 v{S+18}, 0")
    a.i(f"v_mov_b32 v{S+19}, 0")
    a.i("s_nop 0")
    for m in range(0, 9, 2):
        r0 = S + 2 * m
        a.i(f"v_permlane16_swap_b32 v{r0}, v{r0+2}")
        a.i(f"v_permlane16_swap_b32 v{r0+1}, v{r0+3}")
        a.i(f"s_mov_b32 s{sT1}, {m*18432}")
        a.vmem(f"buffer_store_dwordx4 {vr(r0)}, v{vHB if m == 8 else vHA}, s[{S_WS}:{S_WS+3}], s{sT1} offen sc1", "hs")
    stamp(a, "h stores issued")
    a.i(f"s_lshl_b32 s{sT0}, s{sT}, 8")
    a.i(f"s_add_u32 s{sT0}, s{sT0}, 128")
    a.i(f"v_mov_b32 v4, s{sT0}")
    a.i(f"v_or_b32 v5, s{sWAVE}, v{vLANE}")
    a.i(f"v_or_b32 v5, s{sJ}, v5")
    a.i("v_cmp_eq_u32 vcc, 0, v5")
    a.i("v_mov_b32 v6, 0x7fffffff")
    a.i(f"s_mul_i32 s{sT0}, s{sT}, {H_TEAM}")
    a.i(f"s_mul_i32 s{sT1}, s{sJ}, 18432")
    a.i("v_cndmask_b32 v4, v6, v4, vcc")
    a.i(f"s_add_u32 s{sT0}, s{sT0}, s{sT1}")
    a.i(f"s_lshl_b32 s{sT1}, s{sKH}, 10")
    a.i(f"s_add_u32 s{sT0}, s{sT0}, s{sT1}")
    a.i(f"s_add_u32 s{sT0}, s{sT0}, {H_OFF}")
    a.vmem(f"buffer_store_dword v{vTAG}, v4, s[{S_WS}:{S_WS+3}], 0 offen sc1", "seed")
    a.i(f"s_lshl_b32 s{sT1}, s{sCH}, 12")
    a.i(f"s_add_u32 s{sT1}, s{sT1}, s{sT0}")
    a.i(f"v_lshlrev_b32 v4, 8, v{vG}")
    a.i(f"v_lshlrev_b32 v5, 4, v{vR}")
    a.i("v_add_u32 v4, v4, v5")
    a.i(f"v_add_u32 v10, s{sT1}, v4")
    a.i(f"v_lshrrev_b32 v6, 1, v{vG}")
    a.i("v_lshlrev_b32 v6, 10, v6")
    a.i("v_add_u32 v11, v10, v6")
    a.i(f"v_add_u32 v11, {4*2048+512}, v11")
    a.i(f"s_lshl_b32 s{sT1}, s{sCH}, 8")
    a.i(f"s_add_u32 s{sT1}, s{sT1}, s{sT0}")
    a.i(f"v_lshlrev_b32 v6, 2, v{vG}")
    a.i("v_add3_u32 v6, v5, v6, s%d" % sT1)
    a.i(f"v_add_u32 v12, {4*2048}, v6")
    a.i(f"v_add_u32 v13, {8*2048+512}, v6")
    a.i(f"v_lshlrev_b32 v4, 3, v{vG}")
    a.i(f"v_lshrrev_b32 v5, 2, v{vR}")
    a.i("v_add_u32 v4, v4, v5")
    a.i("v_mul_u32_u24 v4, 288, v4")
    a.i(f"v_and_b32 v6, 3, v{vR}")
    a.i("v_lshlrev_b32 v6, 3, v6")
    a.i(f"s_lshl_b32 s{sT0}, s{sCH}, 7")
    a.i(f"s_add_u32 s{sT0}, s{sT0}, {L_WO}")
    a.i(f"v_add3_u32 v15, v4, v6, s{sT0}")
    a.i(f"v_lshlrev_b32 v4, 2, v{vG}")
    a.i("v_add_u32 v4, v4, v5")
    a.i("v_mul_u32_u24 v4, 288, v4")
    a.i(f"s_add_u32 s{sT0}, s{sT0}, {128*288}")
    a.i(f"v_add3_u32 v14, v4, v6, s{sT0}")
    a.wait_vm_emit("wo")
    a.i("s_barrier")
    WF = P
    for t in range(5):
        for ks in range(4):
            for h in range(2):
                d = WF + 18 * t + 4 * ks + 2 * h
                a.i(f"ds_read_b64_tr_b16 v[{d}:{d+1}], v15 offset:{ks*9216 + h*1152 + t*32}")
        d = WF + 18 * t + 16
        a.i(f"ds_read_b64_tr_b16 v[{d}:{d+1}], v14 offset:{t*32}")
    F = (124, 132)
    Gr = (128, 136)
    FQ, GQ = 140, 141
    a.i("s_mov_b32 s63, 0")
    a.label("L_hpoll")
    for s in range(2):
        a.i(f"buffer_load_dwordx4 {vr(F[s])}, v10, s[{S_WS}:{S_WS+3}], 0 offen offset:{s*2048} sc1")
        a.i(f"buffer_load_dwordx4 {vr(Gr[s])}, v11, s[{S_WS}:{S_WS+3}], 0 offen offset:{s*2048} sc1")
    a.i(f"buffer_load_dword v{FQ}, v12, s[{S_WS}:{S_WS+3}], 0 offen sc1")
    a.i(f"buffer_load_dword v{GQ}, v13, s[{S_WS}:{S_WS+3}], 0 offen sc1")
    a.i("s_add_u32 s63, s63, 1")
    a.i("s_waitcnt vmcnt(0)")
    a.i("v_max3_u32 v40, v124, v125, v126")
    a.i("v_max3_u32 v41, v127, v128, v129")
    a.i("v_max3_u32 v42, v130, v131, v132")
    a.i("v_max3_u32 v43, v133, v134, v135")
    a.i("v_max3_u32 v44, v136, v137, v138")
    a.i("v_max3_u32 v45, v139, v140, v141")
    a.i("v_max3_u32 v40, v40, v41, v42")
    a.i("v_max3_u32 v43, v43, v44, v45")
    a.i("v_max_u32 v40, v40, v43")
    a.i("v_cmp_eq_u32 vcc, -1, v40")
    a.i("s_cmp_lt_u32 s63, 0x40000")
    a.i("s_cselect_b64 s[96:97], -1, 0")
    a.i("s_nop 2")
    a.i("s_and_b64 vcc, vcc, s[96:97]")
    a.i("s_cbranch_vccnz L_hpoll")
    a.vm = []
    stamp(a, "h loaded")
    if OPT["stamps"]:
        a.i(f"s_mov_b32 s{S_ST+31}, s63")
    CF, CG, C1, C60 = 64, 66, 68, 98
    a.i(f"v_mov_b32 v{CF}, 0xc038aa3b")
    a.i(f"v_mov_b32 v{CF+1}, 0xc038aa3b")
    a.i(f"v_mov_b32 v{CG}, 0xbfb8aa3b")
    a.i(f"v_mov_b32 v{CG+1}, 0xbfb8aa3b")
    a.i(f"v_mov_b32 v{C1}, 1.0")
    a.i(f"v_mov_b32 v{C1+1}, 1.0")
    a.i(f"s_mov_b32 s{C60}, 0x42700000")
    Z = 70

    def gate(fregs, gregs, zdst):
        nd = len(fregs)
        A, B, D = 40, 48, 56
        for d in range(nd):
            a.i(f"v_lshlrev_b32 v{A+2*d}, 16, v{fregs[d]}")
            a.i(f"v_and_b32 v{A+2*d+1}, s{sMASK}, v{fregs[d]}")
            a.i(f"v_lshlrev_b32 v{B+2*d}, 16, v{gregs[d]}")
            a.i(f"v_and_b32 v{B+2*d+1}, s{sMASK}, v{gregs[d]}")
        for d in range(nd):
            a.i(f"v_pk_mul_f32 v[{A+2*d}:{A+2*d+1}], v[{A+2*d}:{A+2*d+1}], v[{CF}:{CF+1}]")
        for d in range(nd):
            a.i(f"v_pk_mul_f32 v[{B+2*d}:{B+2*d+1}], v[{B+2*d}:{B+2*d+1}], v[{CG}:{CG+1}]")
        for e in range(2 * nd):
            a.i(f"v_min_f32 v{A+e}, s{C60}, v{A+e}")
        for e in range(2 * nd):
            a.i(f"v_exp_f32 v{B+e}, v{B+e}")
        for e in range(2 * nd):
            a.i(f"v_exp_f32 v{A+e}, v{A+e}")
        a.i("s_nop 0")
        for d in range(nd):
            a.i(f"v_pk_add_f32 v[{D+2*d}:{D+2*d+1}], v[{A+2*d}:{A+2*d+1}], v[{C1}:{C1+1}]")
        for d in range(nd):
            a.i(f"v_pk_fma_f32 v[{D+2*d}:{D+2*d+1}], v[{D+2*d}:{D+2*d+1}], v[{B+2*d}:{B+2*d+1}], v[{D+2*d}:{D+2*d+1}]")
        for e in range(2 * nd):
            a.i(f"v_rcp_f32 v{D+e}, v{D+e}")
        for d in range(nd):
            a.i(f"v_pk_add_f32 v[{A+2*d}:{A+2*d+1}], v[{C1}:{C1+1}], v[{A+2*d}:{A+2*d+1}] neg_lo:[0,1] neg_hi:[0,1]")
        a.i("s_nop 0")
        for d in range(nd):
            a.i(f"v_pk_mul_f32 v[{A+2*d}:{A+2*d+1}], v[{A+2*d}:{A+2*d+1}], v[{D+2*d}:{D+2*d+1}]")
        for d in range(nd):
            a.i(f"v_cvt_pk_bf16_f32 v{zdst+d}, v{A+2*d}, v{A+2*d+1}")

    ZP = 4608
    a.i(f"s_mul_i32 s{sT0}, s{sKH}, {ZP}")
    a.i(f"s_add_u32 s{sT0}, s{sT0}, {L_Z}")
    a.i(f"s_lshl_b32 s{sT1}, s{sCH}, 11")
    a.i(f"s_add_u32 s{sT1}, s{sT1}, s{sT0}")
    a.i(f"v_lshlrev_b32 v4, 4, v{vLANE}")
    a.i(f"v_add_u32 v5, s{sT1}, v4")
    a.i(f"v_lshrrev_b32 v6, 1, v{vG}")
    a.i(f"s_lshl_b32 s{sT1}, s{sCH}, 1")
    a.i(f"v_add_u32 v6, s{sT1}, v6")
    a.i("v_lshlrev_b32 v6, 7, v6")
    a.i(f"v_lshlrev_b32 v7, 3, v{vR}")
    a.i("v_add_u32 v6, v6, v7")
    a.i(f"v_and_b32 v7, 1, v{vG}")
    a.i("v_lshlrev_b32 v7, 2, v7")
    a.i(f"s_add_u32 s{sT1}, s{sT0}, 4096")
    a.i(f"v_add3_u32 v6, v6, v7, s{sT1}")
    for s in range(2):
        gate([F[s] + d for d in range(4)], [Gr[s] + d for d in range(4)], Z + 4 * s)
        a.i(f"ds_write_b128 v5, {vr(Z+4*s)} offset:{1024*s}")
    gate([FQ], [GQ], Z + 8)
    a.i(f"ds_write_b32 v6, v{Z+8}")
    a.i(f"v_add_u32 v5, s{sT0}, v4")
    a.i(f"v_lshlrev_b32 v6, 3, v{vLANE}")
    a.i(f"v_add_u32 v6, s{sT1}, v6")
    a.lg_all()
    a.i("s_barrier")
    stamp(a, "gated")
    ZF = 80
    for ks in range(4):
        a.i(f"ds_read_b128 {vr(ZF+4*ks)}, v5 offset:{1024*ks}")
    a.i(f"ds_read_b64 v[{ZF+16}:{ZF+17}], v6")
    a.i(f"s_add_u32 s{sT0}, s{sN0}, s{sJ}")
    a.i(f"v_mul_u32_u24 v4, 9, v{vR}")
    a.i(f"v_add_u32 v4, s{sT0}, v4")
    a.i(f"s_mul_i32 s{sT1}, s{sTAU}, 143")
    a.i(f"v_cmp_gt_i32 vcc, s{sT1}, v4")
    a.i("v_lshlrev_b32 v7, 2, v4")
    a.i(f"s_lshl_b32 s{sT2}, s{sKH}, 1")
    a.i(f"s_add_u32 s{sT2}, s{sT2}, s{sPAR}")
    a.i(f"v_add_u32 v7, s{sT2}, v7")
    a.i("v_mul_u32_u24 v7, 288, v7")
    a.i(f"v_lshlrev_b32 v8, 3, v{vG}")
    a.i("v_add_u32 v7, v7, v8")
    a.i(f"s_lshl_b32 s{sT2}, s{sCH}, 7")
    a.i(f"v_add_u32 v7, s{sT2}, v7")
    a.i("v_mov_b32 v8, 0x7fffffff")
    a.i("v_cndmask_b32 v7, v7, v8, vcc")
    O = 104
    for ks in range(4):
        a.i(f"s_waitcnt lgkmcnt({4-ks})")
        for t in range(5):
            c = "0" if ks == 0 else vr(O + 4 * t)
            a.i(f"v_mfma_f32_16x16x32_bf16 {vr(O+4*t)}, {vr(WF+18*t+4*ks)}, {vr(ZF+4*ks)}, {c}")
    a.i("s_waitcnt lgkmcnt(0)")
    PK = 124
    a.i("s_nop 3")
    for t in range(5):
        a.i(f"v_mfma_f32_16x16x16_bf16 {vr(O+4*t)}, v[{WF+18*t+16}:{WF+18*t+17}], v[{ZF+16}:{ZF+17}], {vr(O+4*t)}")
    a.i("s_nop 3")
    for t in range(5):
        if t == 0:
            a.i("s_nop 0")
        a.i(f"v_cvt_pk_bf16_f32 v{PK+2*t}, v{O+4*t}, v{O+4*t+1}")
        a.i(f"v_cvt_pk_bf16_f32 v{PK+2*t+1}, v{O+4*t+2}, v{O+4*t+3}")
        a.i(f"buffer_store_dwordx2 v[{PK+2*t}:{PK+2*t+1}], v7, s[{S_OUT}:{S_OUT+3}], 0 offen offset:{32*t}")
    if OPT["stamps"]:
        a.i("s_waitcnt vmcnt(0)")


def build():
    a = Asm()
    a.raw(f"; @launch grid=(256,1,1) block=(256,1,1) lds={LDS_MAIN}")
    a.raw('.amdgcn_target "amdgcn-amd-amdhsa--gfx950"\n.text')
    a.raw(f".globl {KNAME}\n.p2align 8\n.type {KNAME},@function")
    gen_kernel(a)
    a.raw('.section .rodata,"a"')
    a.raw(kd(KNAME, 512, 256))
    return a.text()


if __name__ == "__main__":
    out = sys.argv[1] if len(sys.argv) > 1 else "m4.s"
    for k in sys.argv[2:]:
        if "=" in k:
            kk, vv = k.split("=")
            OPT[kk] = tuple(int(x) for x in vv.split(","))
        else:
            OPT[k] = True
    open(out, "w").write(build())
    print("wrote", out)
```

```python
import sys
from asmlib import Asm, vr, ar, kd

KNAME = "standalone__autoregressive_conv_wavenet__speech_kernel"

XROWS = 159
XB = XROWS * 288
L_X0, L_X1, L_XS = 0, XB, 2 * XB
L_RING = 3 * XB
RSLOTS = 6
LDS_MAIN = L_RING + 4 * RSLOTS * 1024
TAPB = 82944
W_BYTES = 31 * TAPB
H_OFF = 0x100000
H_TEAM = 9 * 9 * 2048
L_SLAB, L_WO, L_Z = 0, 36864, 36864 + 49152

S_X, S_W, S_WO, S_OUT, S_WS = 16, 20, 24, 28, 32
sT, sJ, sTAU, sSEQ, sPAR, sB, sWAVE, sCH, sKH, sN0, sRING, sMASK = 36, 37, 38, 39, 40, 41, 42, 43, 44, 45, 46, 47
sI, sTAG = 48, 49
sT0, sT1, sT2, sT3 = 50, 51, 52, 53
sSOFF, sTAP, sTAP3 = 54, 55, 56
sSLOT = 57
S_ST = 64

vLANE, vR, vG = 1, 2, 3
vXB = {"0": 10, "1": 11, "s": 12}
vPB = {"0": 13, "1": 14, "s": 15}
vWD, vWP, vTR, vXA, vXW, vXD = 16, 17, 18, 19, 20, 21
vS = 24
vH0 = (28, 32, 92)
vH1 = (36, 40, 96)
vHS = (44, 48, 144)
vHT = 52
vAD = (68, 72)
vAB = (76, 80)
vAC = (84, 86)
vXA2, vXW2, vXA3, vXW3 = 88, 89, 90, 91
vHA, vHB = 100, 101
vWOA = 103
vFLG, vFLT, vFLV, vTAG = 22, 23, 9, 8
vPFA, vPFP, vPOI, vPOI2 = 0, 102, 104, 84
sC73, sPFO = 63, 100
vW2, vW2L = 86, 87
ACC = {"P": 148, "Q": 184, "R": 220}

OPT = dict(stamps=False, dbg=False, proto="poison")
NSTAMP = [0]


def stamp(a, name, first=False):
    if not OPT["stamps"]:
        return
    k = 0 if first else NSTAMP[0]
    NSTAMP[0] = k + 1
    assert k < 16
    a.i("s_memrealtime s[96:97]")
    a.i("s_memtime s[98:99]")
    a.i("s_waitcnt lgkmcnt(0)")
    a.lg = []
    a.i(f"s_mov_b32 s{S_ST+2*k}, s96")
    a.i(f"s_mov_b32 s{S_ST+2*k+1}, s98")
    a.c(f"stamp {k}: {name}")


def stamp_flush(a):
    if not OPT["stamps"]:
        return
    n = NSTAMP[0]
    for k in range(2 * n):
        a.i(f"v_writelane_b32 v4, s{S_ST+k}, {k}")
    a.i(f"v_writelane_b32 v4, s{S_ST+31}, 31")
    a.i("s_lshl_b32 s96, s2, 7")
    a.i("s_add_u32 s96, s96, 0x800000")
    a.i(f"v_lshlrev_b32 v5, 2, v{vLANE}")
    a.i("v_add_u32 v5, s96, v5")
    a.i(f"v_cmp_gt_u32 vcc, 32, v{vLANE}")
    a.i(f"s_cmp_eq_u32 s{sWAVE}, 0")
    a.i("s_cselect_b64 s[96:97], -1, 0")
    a.i("s_and_b64 vcc, vcc, s[96:97]")
    a.i("v_mov_b32 v6, 0x7fffffff")
    a.i("v_cndmask_b32 v5, v6, v5, vcc")
    a.i(f"buffer_store_dword v4, v5, s[{S_WS}:{S_WS+3}], 0 offen")
    if OPT["dbg"]:
        for k in range(n):
            a.i(f"s_sub_u32 s96, s{S_ST+2*k}, s{S_ST}")
            a.i(f"v_writelane_b32 v4, s96, {k}")
        a.i("s_mov_b32 s96, s12")
        a.i("s_and_b32 s97, s13, 0xffff")
        a.i("s_mov_b32 s98, 256")
        a.i("s_mov_b32 s99, 0x20000")
        a.i(f"v_lshlrev_b32 v5, 2, v{vLANE}")
        a.i(f"v_cmp_gt_u32 vcc, {n}, v{vLANE}")
        a.i(f"s_cmp_eq_u32 s{sWAVE}, 0")
        a.i("s_cselect_b64 s[62:63], -1, 0")
        a.i("s_and_b64 vcc, vcc, s[62:63]")
        a.i("s_cmp_eq_u32 s2, 8")
        a.i("s_cselect_b64 s[62:63], -1, 0")
        a.i("s_and_b64 vcc, vcc, s[62:63]")
        a.i("v_cndmask_b32 v5, v6, v5, vcc")
        a.i("buffer_store_dword v4, v5, s[96:99], 0 offen")
    a.i("s_waitcnt vmcnt(0)")


def srd(a, s, base, nbytes):
    a.i(f"s_mov_b32 s{s}, s{base}")
    a.i(f"s_and_b32 s{s+1}, s{base+1}, 0xffff")
    a.i(f"s_mov_b32 s{s+2}, {nbytes}")
    a.i(f"s_mov_b32 s{s+3}, 0x20000")


def decode_wg(a, exit_label):
    a.i("s_cmp_ge_u32 s2, 256")
    a.i(f"s_cbranch_scc1 {exit_label}")
    a.i(f"s_and_b32 s{sT0}, s2, 7")
    a.i(f"s_lshl_b32 s{sT0}, s{sT0}, 5")
    a.i(f"s_lshr_b32 s{sT1}, s2, 3")
    a.i(f"s_add_u32 s{sI}, s{sT0}, s{sT1}")
    a.i(f"s_cmp_ge_u32 s{sI}, 252")
    a.i(f"s_cbranch_scc1 {exit_label}")
    a.i("s_load_dwordx4 s[4:7], s[0:1], 0")
    a.i("s_load_dwordx4 s[8:11], s[0:1], 16")
    a.i("s_load_dwordx4 s[12:15], s[0:1], 32")
    a.i(f"s_mul_i32 s{sT}, s{sI}, 7282")
    a.i(f"s_lshr_b32 s{sT}, s{sT}, 16")
    a.i(f"s_mul_i32 s{sT0}, s{sT}, 9")
    a.i(f"s_sub_u32 s{sJ}, s{sI}, s{sT0}")
    a.i(f"s_mul_i32 s{sSEQ}, s{sT}, 9363")
    a.i(f"s_lshr_b32 s{sSEQ}, s{sSEQ}, 16")
    a.i(f"s_mul_i32 s{sT0}, s{sSEQ}, 7")
    a.i(f"s_sub_u32 s{sTAU}, s{sT}, s{sT0}")
    a.i(f"s_and_b32 s{sPAR}, s{sSEQ}, 1")
    a.i(f"s_lshr_b32 s{sB}, s{sSEQ}, 1")
    a.i(f"s_mul_i32 s{sN0}, s{sTAU}, 143")
    a.i(f"s_sub_u32 s{sN0}, s{sN0}, 1")
    a.i("v_lshrrev_b32 v4, 6, v0")
    a.i(f"v_and_b32 v{vLANE}, 63, v0")
    a.i(f"v_readfirstlane_b32 s{sWAVE}, v4")
    a.i(f"v_and_b32 v{vR}, 15, v{vLANE}")
    a.i(f"v_lshrrev_b32 v{vG}, 4, v{vLANE}")
    a.i(f"s_and_b32 s{sCH}, s{sWAVE}, 1")
    a.i(f"s_lshr_b32 s{sKH}, s{sWAVE}, 1")
    a.i(f"s_mul_i32 s{sT0}, s{sB}, 1152000")


def make_srds(a):
    a.i("s_waitcnt lgkmcnt(0)")
    a.i(f"s_add_u32 s{S_X}, s4, s{sT0}")
    a.i(f"s_addc_u32 s{S_X+1}, s5, 0")
    a.i(f"s_and_b32 s{S_X+1}, s{S_X+1}, 0xffff")
    a.i(f"s_mov_b32 s{S_X+2}, 1152000")
    a.i(f"s_mov_b32 s{S_X+3}, 0x20000")
    srd(a, S_W, 6, W_BYTES)
    srd(a, S_WO, 8, 41472)
    a.i(f"s_add_u32 s{S_OUT}, s10, s{sT0}")
    a.i(f"s_addc_u32 s{S_OUT+1}, s11, 0")
    a.i(f"s_and_b32 s{S_OUT+1}, s{S_OUT+1}, 0xffff")
    a.i(f"s_mov_b32 s{S_OUT+2}, 1152000")
    a.i(f"s_mov_b32 s{S_OUT+3}, 0x20000")
    srd(a, S_WS, 14, 0x10000000)


class Step:
    def __init__(self, seg, j):
        self.seg, self.j = seg, j
        self.hasQ = not (seg in "AB" and j == 15)
        self.items = []
        if seg in ("A", "B"):
            so = 18432 if seg == "B" else 0
            self.items.append(("H0", 2 * j * TAPB + so, vWD))
            if self.hasQ:
                self.items.append(("H1", (2 * j + 1) * TAPB + so, vWD))
            self.shift = j
        else:
            self.items.append(("H0", 4 * j * TAPB, vWP))
            self.items.append(("H1", (4 * j + 1) * TAPB, vWP))
            self.shift = 2 * j

    def xkeys(self):
        ks = []
        for seq in ("0", "1", "s"):
            if seq == "1" and not self.hasQ:
                continue
            for m in range(9):
                ks.append((seq, self.seg, m - self.shift))
        return ks


STEPS = [Step("A", j) for j in range(16)] + [Step("B", j) for j in range(16)] + [Step("Pr", j) for j in range(4)]
NST = len(STEPS)


def x_addr(key):
    seq, seg, q = key
    if seg == "Pr":
        return vPB[seq], (q + 15) * 288
    return vXB[seq], (q + 15) * 288 + (64 if seg == "B" else 0)


class XWin:
    def __init__(self):
        self.pool = {"0": list(range(0, 21)), "1": list(range(21, 42)), "s": list(range(42, 63))}
        self.slot = {}
        self.last = {}
        for si, st in enumerate(STEPS):
            for k in st.xkeys():
                self.last[k] = si

    def alloc(self, key):
        s = self.pool[key[0]].pop(0)
        self.slot[key] = s
        return s * 4

    def reg(self, key):
        return self.slot[key] * 4

    def release_after(self, si):
        for k, s in list(self.slot.items()):
            if self.last[k] == si:
                self.pool[k[0]].append(s)
                del self.slot[k]


def hs_valu(h0, h1, hs):
    st = []
    for stage in range(7):
        for d in range(4):
            t = vHT + 4 * d
            st.append([f"v_lshlrev_b32 v{t}, 16, v{h0+d}", f"v_lshlrev_b32 v{t+1}, 16, v{h1+d}",
                       f"v_and_b32 v{t+2}, s{sMASK}, v{h0+d}", f"v_and_b32 v{t+3}, s{sMASK}, v{h1+d}",
                       f"v_add_f32 v{t}, v{t}, v{t+1}", f"v_add_f32 v{t+2}, v{t+2}, v{t+3}",
                       f"v_cvt_pk_bf16_f32 v{hs+d}, v{t}, v{t+2}"][stage])
    return st


def w_granule_kk(a, dst):
    a.i(f"v_lshrrev_b32 v4, 3, v{vLANE}")
    a.i("v_lshrrev_b32 v5, 2, v4")
    a.i("v_lshlrev_b32 v5, 4, v5")
    a.i("v_and_b32 v6, 1, v4")
    a.i("v_lshlrev_b32 v6, 3, v6")
    a.i("v_add_u32 v5, v5, v6")
    a.i("v_and_b32 v6, 2, v4")
    a.i("v_lshlrev_b32 v6, 1, v6")
    a.i("v_add_u32 v5, v5, v6")
    a.i(f"v_bfe_u32 v6, v{vLANE}, 1, 2")
    a.i(f"v_add_u32 v{dst}, v5, v6")


def tr_base(a, dst, sbase):
    a.i(f"v_lshrrev_b32 v4, 1, v{vG}")
    a.i("v_lshlrev_b32 v4, 9, v4")
    a.i(f"v_and_b32 v5, 1, v{vG}")
    a.i("v_lshlrev_b32 v5, 7, v5")
    a.i("v_add_u32 v4, v4, v5")
    a.i(f"v_lshrrev_b32 v5, 2, v{vR}")
    a.i("v_lshlrev_b32 v5, 5, v5")
    a.i("v_add_u32 v4, v4, v5")
    a.i(f"v_and_b32 v5, 3, v{vR}")
    a.i("v_lshlrev_b32 v5, 3, v5")
    a.i("v_add_u32 v4, v4, v5")
    a.i(f"v_add_u32 v{dst}, s{sbase}, v4")


def typed(f, t):
    f.t = t
    return f


def T(fs, t):
    return [typed(f, t) for f in fs]


def emit_gaps(mf, qmem, qval):
    qmem, qval = list(qmem), list(qval)
    n = len(mf)
    for g, m in enumerate(mf):
        m()
        left = n - g
        nvec = ns = 0
        took = False
        while qmem:
            t = qmem[0].t
            if g < getattr(qmem[0], "mingap", 0) and left > 2:
                break
            if t == "s":
                if ns >= 3:
                    break
                qmem.pop(0)()
                ns += 1
            elif t == "m":
                if took:
                    break
                qmem.pop(0)()
                took = True
            elif t == "d":
                if nvec:
                    break
                qmem.pop(0)()
                nvec = 2
                break
            else:
                nl = sum(1 for f in qmem if f.t != "s")
                if nvec >= 2 or (nvec >= 1 and nl <= left - 1):
                    break
                qmem.pop(0)()
                nvec += 1
        while qval and nvec < 2:
            qval.pop(0)()
            nvec += 1
    for f in qmem + qval:
        f()


def srd_x(a):
    a.i("s_waitcnt lgkmcnt(0)")
    a.i(f"s_add_u32 s{S_X}, s4, s{sT0}")
    a.i(f"s_addc_u32 s{S_X+1}, s5, 0")
    a.i(f"s_and_b32 s{S_X+1}, s{S_X+1}, 0xffff")
    a.i(f"s_mov_b32 s{S_X+2}, 1152000")
    a.i(f"s_mov_b32 s{S_X+3}, 0x20000")


def srd_rest(a):
    srd(a, S_WO, 8, 41472)
    a.i(f"s_add_u32 s{S_OUT}, s10, s{sT0}")
    a.i(f"s_addc_u32 s{S_OUT+1}, s11, 0")
    a.i(f"s_and_b32 s{S_OUT+1}, s{S_OUT+1}, 0xffff")
    a.i(f"s_mov_b32 s{S_OUT+2}, 1152000")
    a.i(f"s_mov_b32 s{S_OUT+3}, 0x20000")


def SW(fn):
    return typed(fn, "s")


def diag_delay(a, where):
    if OPT.get("delay") != where and OPT.get("delay") != (where,):
        return
    a.i("s_waitcnt lgkmcnt(0)")
    a.lg = []
    a.i("s_memrealtime s[96:97]")
    a.i("s_waitcnt lgkmcnt(0)")
    a.i("s_add_u32 s98, s96, 200")
    a.label(f"L_delay{where}")
    a.i("s_memrealtime s[96:97]")
    a.i("s_waitcnt lgkmcnt(0)")
    a.i("s_sub_u32 s99, s96, s98")
    a.i("s_cmp_lt_i32 s99, 0")
    a.i(f"s_cbranch_scc1 L_delay{where}")


def gen_kernel(a):
    a.label(KNAME)
    stamp(a, "entry", first=True)
    decode_wg(a, "L_end")
    diag_delay(a, 0)
    a.i(f"s_mov_b32 s{sC73}, 73728")
    a.i(f"v_mul_u32_u24 v4, 3641, v{vLANE}")
    a.i("v_lshrrev_b32 v4, 16, v4")
    a.i("v_mul_u32_u24 v6, 18, v4")
    a.i(f"v_sub_u32 v6, v{vLANE}, v6")
    a.i("v_mul_u32_u24 v4, 1152, v4")
    a.i("v_lshlrev_b32 v6, 4, v6")
    a.i("v_add_u32 v4, v4, v6")
    a.i(f"s_sub_u32 s{sT1}, s{sN0}, 15")
    a.i(f"s_mul_i32 s{sT1}, s{sT1}, 1152")
    a.i(f"s_mul_i32 s{sT2}, s{sPAR}, 288")
    a.i(f"s_add_u32 s{sT1}, s{sT1}, s{sT2}")
    a.i(f"v_add_u32 v147, s{sT1}, v4")
    a.i(f"s_mul_i32 s{sT3}, s{sWAVE}, 9")
    a.i(f"v_lshrrev_b32 v8, 2, v{vLANE}")
    a.i("v_min_u32 v8, 8, v8")
    a.i(f"v_add_u32 v8, s{sT3}, v8")
    a.i("v_lshrrev_b32 v9, 1, v8")
    a.i(f"s_mul_i32 s{sT2}, s{sJ}, 18")
    a.i(f"v_add_u32 v9, s{sT2}, v9")
    a.i("v_mul_u32_u24 v9, 1152, v9")
    a.i("v_and_b32 v8, 1, v8")
    a.i("v_mul_u32_u24 v8, 576, v8")
    a.i("v_add_u32 v9, v9, v8")
    a.i(f"v_and_b32 v8, 3, v{vLANE}")
    a.i("v_mul_u32_u24 v8, 92, v8")
    a.i("v_add_u32 v9, v9, v8")
    a.i(f"v_add_u32 v22, s{sT1}, v9")
    a.i("v_and_b32 v22, -4, v22")
    srd_x(a)
    if not OPT.get("noxpf"):
        a.vmem(f"buffer_load_dword v68, v22, s[{S_X}:{S_X+3}], 0 offen", "pf")
    srd(a, S_W, 6, W_BYTES)
    a.i(f"s_lshl_b32 s{sT2}, s{sI}, 2")
    a.i(f"s_add_u32 s{sT2}, s{sT2}, s{sWAVE}")
    a.i(f"s_mul_i32 s{sT2}, s{sT2}, 3")
    a.i(f"v_min_u32 v4, 2, v{vLANE}")
    a.i(f"v_add_u32 v4, s{sT2}, v4")
    a.i("v_mul_u32_u24 v5, 3641, v4")
    a.i("v_lshrrev_b32 v5, 20, v5")
    a.i("v_mul_u32_u24 v6, 288, v5")
    a.i("v_sub_u32 v6, v4, v6")
    a.i(f"v_mul_u32_u24 v23, {TAPB}, v5")
    a.i("v_cmp_le_u32 vcc, 144, v6")
    a.i("v_lshlrev_b32 v7, 7, v6")
    a.i("v_add_u32 v23, v23, v7")
    a.i(f"v_add_u32 v7, {36864 - 144*128}, v23")
    a.i("v_cndmask_b32 v23, v23, v7, vcc")
    a.i("v_cmp_le_u32 vcc, 8, v5")
    a.i("v_mov_b32 v7, 0x7fffffff")
    a.i("v_mul_u32_u24 v5, 14564, v4")
    a.i(f"v_cndmask_b32 v{vPFA}, v23, v7, vcc")
    a.i("v_lshrrev_b32 v5, 20, v5")
    a.i("v_mul_u32_u24 v6, 72, v5")
    a.i("v_sub_u32 v6, v4, v6")
    a.i("v_lshlrev_b32 v6, 7, v6")
    a.i(f"v_mul_u32_u24 v5, {TAPB}, v5")
    a.i(f"v_add3_u32 v{vPFP}, v5, v6, s{sC73}")
    def w_pf(reg, soff, dst=vXD):
        return [SW(lambda: a.i(f"s_mov_b32 s{sPFO}, {soff}")),
                typed(lambda: a.vmem(f"buffer_load_dword v{dst}, v{reg}, s[{S_W}:{S_W+3}], s{sPFO} offen", "pf"), "d")]
    if not OPT.get("nowpf"):
        for f in w_pf(vPFA, 0, 69) + w_pf(vPFA, 8 * TAPB, 69):
            f()
    srd(a, S_WS, 14, 0x10000000)
    a.i(f"s_lshl_b32 s{sT2}, s{sT}, 8")
    a.i(f"s_add_u32 s{sT2}, s{sT2}, 128")
    a.i(f"s_load_dword s{sTAG}, s[14:15], s{sT2}")
    a.i(f"s_mul_i32 s{sT3}, s{sT}, {H_TEAM}")
    a.i(f"s_lshl_b32 s{sT1}, s{sJ}, 11")
    a.i(f"s_add_u32 s{sT3}, s{sT3}, s{sT1}")
    a.i(f"s_lshl_b32 s{sT1}, s{sKH}, 10")
    a.i(f"s_add_u32 s{sT3}, s{sT3}, s{sT1}")
    a.i(f"s_lshl_b32 s{sT1}, s{sCH}, 9")
    a.i(f"s_add_u32 s{sT3}, s{sT3}, s{sT1}")
    a.i(f"s_add_u32 s{sT3}, s{sT3}, {H_OFF}")
    a.i(f"v_and_b32 v4, 1, v{vG}")
    a.i("v_mul_u32_u24 v5, 18432, v4")
    a.i(f"v_lshrrev_b32 v6, 1, v{vG}")
    a.i("v_lshlrev_b32 v6, 8, v6")
    a.i(f"v_lshlrev_b32 v7, 4, v{vR}")
    a.i("v_add3_u32 v5, v5, v6, v7")
    a.i(f"v_add_u32 v{vHA}, s{sT3}, v5")
    a.i("v_cmp_eq_u32 vcc, 1, v4")
    a.i("v_mov_b32 v6, 0x7fffffff")
    a.i("s_nop 0")
    a.i(f"v_cndmask_b32 v{vHB}, v{vHA}, v6, vcc")

    for d in range(4):
        a.i(f"v_mov_b32 v{vPOI2+d}, -1")
    srd_rest(a)
    w_granule_kk(a, 5)
    a.i(f"v_and_b32 v6, 1, v{vLANE}")
    a.i("v_lshlrev_b32 v6, 4, v6")
    a.i(f"s_lshl_b32 s{sT2}, s{sJ}, 6")
    a.i(f"s_lshl_b32 s{sT1}, s{sCH}, 5")
    a.i(f"s_add_u32 s{sT2}, s{sT2}, s{sT1}")
    a.i(f"v_add_u32 v6, s{sT2}, v6")
    a.i("v_mul_u32_u24 v7, 576, v5")
    a.i("v_add_u32 v7, v7, v6")
    a.i(f"s_mul_i32 s{sT1}, s{sKH}, 36864")
    a.i(f"v_add_u32 v{vWD}, s{sT1}, v7")
    a.i("v_and_b32 v7, 15, v5")
    a.i("v_mul_u32_u24 v7, 576, v7")
    a.i("v_lshrrev_b32 v8, 4, v5")
    a.i(f"v_mul_u32_u24 v8, {2*TAPB}, v8")
    a.i("v_add_u32 v7, v7, v8")
    a.i("v_add_u32 v7, v7, v6")
    a.i(f"s_mul_i32 s{sT1}, s{sKH}, {16*TAPB}")
    a.i(f"s_add_u32 s{sT1}, s{sT1}, {128*576}")
    a.i(f"v_add_u32 v{vWP}, s{sT1}, v7")
    a.i(f"s_mul_i32 s{sRING}, s{sWAVE}, {RSLOTS*1024}")
    a.i(f"s_add_u32 s{sRING}, s{sRING}, {L_RING}")
    for k in range(RSLOTS):
        a.i(f"s_add_u32 s{sSLOT+k}, s{sRING}, {k*1024}")
    a.i(f"s_mov_b32 s{sTAP}, {TAPB}")
    a.i(f"s_mov_b32 s{sTAP3}, {3*TAPB}")
    a.i(f"s_mov_b32 s{sMASK}, 0xffff0000")

    items = []
    for si, st in enumerate(STEPS):
        for it in st.items:
            items.append((si,) + it)
    slot_of = {(si, nm): k % RSLOTS for k, (si, nm, _, _) in enumerate(items)}
    cur_soff = [None]

    def dma_instrs(si):
        out = []
        for nm, so, vreg in STEPS[si].items:
            sl = slot_of[(si, nm)]

            def f_soff(so=so):
                prev = cur_soff[0]
                if prev is not None and so - prev == TAPB:
                    a.i(f"s_add_u32 s{sSOFF}, s{sSOFF}, s{sTAP}")
                elif prev is not None and so - prev == 3 * TAPB:
                    a.i(f"s_add_u32 s{sSOFF}, s{sSOFF}, s{sTAP3}")
                else:
                    a.i(f"s_mov_b32 s{sSOFF}, {so}")
                cur_soff[0] = so
            out.append(lambda sl=sl: a.i(f"s_mov_b32 m0, s{sSLOT+sl}"))
            out.append(f_soff)
            out.append(lambda vreg=vreg, si=si: a.vmem(
                f"buffer_load_dwordx4 v{vreg}, s[{S_W}:{S_W+3}], s{sSOFF} offen lds", ("w", si)))
        return out

    def dma_typed(si):
        return [typed(f, "d" if k % 3 == 2 else "s") for k, f in enumerate(dma_instrs(si))]

    for f in dma_instrs(0):
        f()
    a.i(f"s_mul_i32 s{sT1}, s{sWAVE}, {3*1152}")
    a.i(f"v_add_u32 v{vXD}, s{sT1}, v147")
    a.i(f"v_add_u32 v8, 576, v{vXD}")
    a.i(f"v_add_u32 v9, {156*1152}, v147")
    a.i(f"v_add_u32 v7, {156*1152+576}, v147")
    a.i(f"s_mul_i32 s{sT2}, s{sWAVE}, 864")
    a.i("s_mov_b32 exec_lo, -1")
    a.i("s_mov_b32 exec_hi, 0x3fffff")
    for sel in range(2):
        base = L_X1 if sel else L_X0
        reg = 8 if sel else vXD
        for i in range(14):
            if i < 13:
                a.i(f"s_add_u32 m0, s{sT2}, {base + 3456*i}")
                a.i(f"v_add_u32 v{reg}, 13824, v{reg}" if i else "s_nop 0")
                a.vmem(f"buffer_load_dwordx4 v{reg}, s[{S_X}:{S_X+3}], 0 offen lds", "x")
            else:
                a.i(f"s_mov_b32 m0, {base + 156*288}")
                a.i("s_nop 0")
                a.vmem(f"buffer_load_dwordx4 v{7 if sel else 9}, s[{S_X}:{S_X+3}], 0 offen lds", "x")
    a.i("s_mov_b64 exec, -1")
    for si in (1, 2):
        for f in dma_instrs(si):
            f()
    if OPT.get("pfpro"):
        for so in (16, 24):
            for f in w_pf(vPFA, so * TAPB):
                f()
        for so in (0, 8, 16, 24):
            for f in w_pf(vPFA, so * TAPB + 18432):
                f()
        for f in w_pf(vPFP, 0):
            f()
    a.i(f"s_lshl_b32 s{sT0}, s{sI}, 2")
    a.i(f"s_add_u32 s{sT0}, s{sT0}, s{sWAVE}")
    a.i(f"s_mul_i32 s{sT1}, s{sT0}, 203")
    a.i(f"s_lshr_b32 s{sT1}, s{sT1}, 16")
    a.i(f"s_mul_i32 s{sT1}, s{sT1}, 324")
    a.i(f"s_sub_u32 s{sT0}, s{sT0}, s{sT1}")
    a.i(f"s_lshl_b32 s{sT0}, s{sT0}, 7")
    a.i(f"v_mov_b32 v4, s{sT0}")
    a.vmem(f"buffer_load_dword v{vXD}, v4, s[{S_WO}:{S_WO+3}], 0 offen", "pf2")
    a.i(f"v_mul_u32_u24 v4, 2592, v{vR}")
    a.i(f"v_lshlrev_b32 v5, 4, v{vG}")
    a.i("v_add_u32 v5, v4, v5")
    a.i(f"s_lshl_b32 s{sT0}, s{sKH}, 7")
    a.i(f"v_add_u32 v{vXB['0']}, s{sT0}, v5")
    a.i(f"v_add_u32 v{vXB['1']}, {L_X1}, v{vXB['0']}")
    a.i(f"v_add_u32 v{vXB['s']}, {L_XS}, v{vXB['0']}")
    a.i(f"v_and_b32 v5, 1, v{vG}")
    a.i("v_lshlrev_b32 v5, 4, v5")
    a.i("v_add_u32 v5, v4, v5")
    a.i(f"v_lshrrev_b32 v6, 1, v{vG}")
    a.i("v_mul_u32_u24 v6, 288, v6")
    a.i("v_sub_u32 v5, v5, v6")
    a.i(f"s_mul_i32 s{sT0}, s{sKH}, {8*288}")
    a.i(f"s_sub_u32 s{sT0}, 256, s{sT0}")
    a.i(f"v_add_u32 v{vPB['0']}, s{sT0}, v5")
    a.i(f"v_add_u32 v{vPB['1']}, {L_X1}, v{vPB['0']}")
    a.i(f"v_add_u32 v{vPB['s']}, {L_XS}, v{vPB['0']}")
    tr_base(a, vTR, sRING)
    a.i(f"v_mul_u32_u24 v4, 288, v{vR}")
    a.i(f"v_lshrrev_b32 v5, 1, v{vG}")
    a.i(f"v_mul_u32_u24 v5, {XB}, v5")
    a.i(f"v_and_b32 v6, 1, v{vG}")
    a.i("v_lshlrev_b32 v6, 4, v6")
    a.i("v_add3_u32 v5, v4, v5, v6")
    a.i(f"v_lshlrev_b32 v6, 3, v{vG}")
    a.i("v_add_u32 v6, v4, v6")
    a.i(f"v_add_u32 v6, {L_XS}, v6")
    a.i(f"s_lshl_b32 s{sT0}, s{sKH}, 7")
    a.i(f"s_lshl_b32 s{sT1}, s{sCH}, 5")
    a.i(f"s_add_u32 s{sT0}, s{sT0}, s{sT1}")
    a.i(f"v_add_u32 v{vXA}, s{sT0}, v5")
    a.i(f"v_add_u32 v{vXW}, s{sT0}, v6")
    a.i(f"s_mul_i32 s{sT0}, s{sWAVE}, {16*288}")
    a.i(f"s_add_u32 s{sT0}, s{sT0}, 256")
    a.i(f"v_add_u32 v{vXA2}, s{sT0}, v5")
    a.i(f"v_add_u32 v{vXW2}, s{sT0}, v6")
    a.i(f"s_lshl_b32 s{sT0}, s{sWAVE}, 4")
    a.i(f"s_add_u32 s{sT0}, s{sT0}, 128")
    a.i(f"s_min_u32 s{sT0}, s{sT0}, 143")
    a.i(f"s_mul_i32 s{sT0}, s{sT0}, 288")
    a.i(f"s_add_u32 s{sT0}, s{sT0}, 256")
    a.i(f"v_add_u32 v{vXA3}, s{sT0}, v5")
    a.i(f"v_add_u32 v{vXW3}, s{sT0}, v6")
    a.i(f"v_mul_u32_u24 v4, 288, v{vR}")
    a.i(f"v_lshrrev_b32 v5, 1, v{vG}")
    a.i("v_lshlrev_b32 v5, 4, v5")
    a.i(f"s_lshl_b32 s{sT0}, s{sKH}, 7")
    a.i(f"s_lshl_b32 s{sT1}, s{sCH}, 5")
    a.i(f"s_add_u32 s{sT0}, s{sT0}, s{sT1}")
    a.i(f"s_add_u32 s{sT0}, s{sT0}, {L_XS}")
    a.i(f"v_add3_u32 v4, v4, v5, s{sT0}")
    a.i(f"v_and_b32 v5, 1, v{vG}")
    a.i(f"v_mul_u32_u24 v6, {16*288}, v5")
    a.i(f"v_add_u32 v{vW2}, v4, v6")
    a.i(f"v_mul_u32_u24 v6, {15*288}, v5")
    a.i(f"v_add_u32 v{vW2L}, v4, v6")
    a.i(f"v_lshrrev_b32 v4, 3, v{vR}")
    a.i(f"v_and_b32 v5, 1, v{vG}")
    a.i("v_cmp_eq_u32 vcc, v4, v5")
    a.i(f"v_and_b32 v4, 1, v{vR}")
    a.i("v_lshlrev_b32 v4, 4, v4")
    a.i("v_mov_b32 v5, 0x3f80")
    a.i("v_lshlrev_b32 v4, v4, v5")
    a.i("v_cndmask_b32 v4, 0, v4, vcc")
    a.i(f"v_bfe_u32 v5, v{vR}, 1, 2")
    for d in range(4):
        a.i(f"v_cmp_eq_u32 vcc, {d}, v5")
        a.i("s_nop 1")
        a.i(f"v_cndmask_b32 v{vS+d}, 0, v4, vcc")
    a.i(f"s_lshl_b32 s{sT0}, s{sT}, 8")
    a.i(f"s_lshl_b32 s{sT1}, s{sJ}, 2")
    a.i(f"s_add_u32 s{sT1}, s{sT1}, s{sT0}")
    a.i(f"v_mov_b32 v4, s{sT1}")
    a.i(f"v_or_b32 v5, s{sWAVE}, v{vLANE}")
    a.i("v_cmp_eq_u32 vcc, 0, v5")
    a.i("v_mov_b32 v6, 0x7fffffff")
    a.i(f"v_min_u32 v7, 8, v{vLANE}")
    a.i(f"v_cndmask_b32 v{vFLG}, v6, v4, vcc")
    a.i("v_lshlrev_b32 v7, 2, v7")
    a.i(f"v_add_u32 v{vFLT}, s{sT0}, v7")

    def blocks(seg):
        if seg in ("A", "B"):
            so = 64 if seg == "B" else 0
            return [(vXA, vXW, min(16 * rb, 143) * 288 + so) for rb in range(10)]
        return [(vXA2, vXW2, 0), (vXA2, vXW2, 64 * 288), (vXA3, vXW3, 0)]

    def ad_read(bi, blk):
        ra, _, imm = blk
        return lambda: a.lds(f"ds_read_b128 {vr(vAB[bi % 2])}, v{ra} offset:{imm}", ("ab", bi % 2))

    def ad_mfma(bi):
        def f():
            a.wait_lg_emit(("ab", bi % 2))
            a.i(f"v_mfma_f32_16x16x32_bf16 {vr(vAD[bi % 2])}, {vr(vS)}, {vr(vAB[bi % 2])}, 0")
        return f

    def ad_fin(bi, blk):
        _, wa, imm = blk
        d, c = vAD[bi % 2], vAC[bi % 2]
        return [lambda: a.i(f"v_cvt_pk_bf16_f32 v{c}, v{d}, v{d+1}"),
                lambda: a.i(f"v_cvt_pk_bf16_f32 v{c+1}, v{d+2}, v{d+3}"),
                lambda: a.lds(f"ds_write_b64 v{wa}, v[{c}:{c+1}] offset:{imm}", "xw")]

    xw = XWin()

    def x_read(key):
        def f():
            reg, imm = x_addr(key)
            d = xw.alloc(key)
            a.lds(f"ds_read_b128 {ar(d)}, v{reg} offset:{imm}", ("x", key))
        return f

    def tr_reads(si):
        out = []
        b = si % 3
        for nm, _, _ in STEPS[si].items:
            sl = slot_of[(si, nm)]
            d = (vH0 if nm == "H0" else vH1)[b]
            for h in range(2):
                out.append(lambda d=d, h=h, sl=sl, si=si: a.lds(
                    f"ds_read_b64_tr_b16 v[{d+2*h}:{d+2*h+1}], v{vTR} offset:{sl*1024 + h*256}", ("tr", si)))
        return out

    def hs_ops(si):
        if not STEPS[si].hasQ:
            return []
        return [lambda s=s: a.i(s) for s in hs_valu(vH0[si % 3], vH1[si % 3], vHS[si % 3])]

    def mf_list(si, groups):
        st = STEPS[si]
        out = []
        for grp in groups:
            seq = {"P": "0", "Q": "1", "R": "s"}[grp]
            if grp == "Q" and not st.hasQ:
                continue
            wreg = {"P": vH0[si % 3], "Q": vH1[si % 3], "R": vHS[si % 3] if st.hasQ else vH0[si % 3]}[grp]
            for m in range(9):
                key = (seq, st.seg, m - st.shift)
                acc = ACC[grp] + 4 * m
                c = "0" if si == 0 else vr(acc)
                out.append(lambda key=key, acc=acc, wreg=wreg, c=c: a.i(
                    f"v_mfma_f32_16x16x32_bf16 {vr(acc)}, {vr(wreg)}, {ar(xw.reg(key))}, {c}"))
        return out

    stamp(a, "issued")
    a.wait_vm_emit(("w", 0))
    for f in tr_reads(0):
        f()
    a.wait_vm_emit("x")
    a.i("s_waitcnt lgkmcnt(0)")
    a.lg = []
    for f in dma_instrs(3):
        f()

    a.i("s_barrier")
    stamp(a, "x landed")
    a.i(f"s_mul_i32 s{sTAG}, s{sTAG}, 1664525")
    a.i(f"s_add_u32 s{sTAG}, s{sTAG}, 1013904223")
    loaded = set()

    def new_x(si, seqs):
        out = []
        for k in STEPS[si].xkeys():
            if k not in loaded and k[0] in seqs:
                loaded.add(k)
                out.append(typed(x_read(k), "l"))
        return out

    for f in new_x(0, "01"):
        f()
    a.i(f"v_mov_b32 v{vTAG}, s{sTAG}")

    TB, TD = 104, ACC["R"]
    bl = blocks("A")
    q = []
    for bi, (ra, wa, imm) in enumerate(bl):
        q.append(typed(lambda bi=bi, ra=ra, imm=imm: a.lds(f"ds_read_b128 {vr(TB+4*bi)}, v{ra} offset:{imm}", ("pb", bi)), "l"))
    q = [SW(lambda: a.wait_vm_emit(("w", 1)))] + T(tr_reads(1), "l") + q
    q += new_x(1, "01")
    q.append(SW(lambda: a.wait_vm_emit(("w", 2))))
    q += T(tr_reads(2), "l")
    for bi in range(10):
        def f(bi=bi):
            a.wait_lg_emit(("pb", bi))
            d = TD + 4 * bi if bi < 9 else vAD[0]
            a.i(f"v_mfma_f32_16x16x32_bf16 {vr(d)}, {vr(vS)}, {vr(TB+4*bi)}, 0")
        q.append(typed(f, "m"))
    stamp(a, "step 0")
    a.wait_lg_emit([("x", k) for k in STEPS[0].xkeys()] + [("tr", 0)])
    emit_gaps(mf_list(0, "PQ"), q, hs_ops(0))
    if OPT.get("fb"): stamp(a, "PQ0 done")
    fin = []
    for bi in range(0, 10, 2):
        d = TD + 4 * bi
        d2 = TD + 4 * (bi + 1) if bi + 1 < 9 else vAD[0]
        imm = bl[bi][2]
        wa = vW2 if bi < 8 else vW2L
        fin.append(lambda d=d: a.i(f"v_cvt_pk_bf16_f32 v{d}, v{d}, v{d+1}"))
        fin.append(lambda d=d: a.i(f"v_cvt_pk_bf16_f32 v{d+1}, v{d+2}, v{d+3}"))
        fin.append(lambda d=d, d2=d2: a.i(f"v_cvt_pk_bf16_f32 v{d+2}, v{d2}, v{d2+1}"))
        fin.append(lambda d=d, d2=d2: a.i(f"v_cvt_pk_bf16_f32 v{d+3}, v{d2+2}, v{d2+3}"))
        fin.append(lambda: a.i("s_nop 1"))
        fin.append(lambda d=d: a.i(f"v_permlane16_swap_b32 v{d}, v{d+2}"))
        fin.append(lambda d=d: a.i(f"v_permlane16_swap_b32 v{d+1}, v{d+3}"))
        fin.append(lambda d=d, wa=wa, imm=imm: a.lds(f"ds_write_b128 v{wa}, {vr(d)} offset:{imm}", "xw"))
    a.wait_lg_emit([("x", k) for k in STEPS[1].xkeys()] + [("tr", 1)])
    q = dma_typed(4) + ([] if OPT.get("nowpf") or OPT.get("pfpro") else w_pf(vPFA, 16 * TAPB)) + new_x(2, "01")
    emit_gaps(mf_list(1, "PQ"), q, fin)
    if OPT.get("fb"): stamp(a, "PQ1 done")
    a.lg_all()
    a.i("s_barrier")
    if OPT.get("fb"): stamp(a, "bar")
    q = new_x(0, "s") + new_x(1, "s") + new_x(2, "s")
    q += dma_typed(5)
    q.append(SW(lambda: a.wait_vm_emit(("w", 3))))
    q += T(tr_reads(3), "l")
    h12 = hs_ops(1) + hs_ops(2)
    emit_gaps(mf_list(2, "PQ"), q, h12[:36])
    if OPT.get("fb"): stamp(a, "PQ2 done")
    q = new_x(3, "01s")
    q.append(SW(lambda: a.wait_vm_emit(("w", 4))))
    q += T(tr_reads(4), "l")
    q.append(SW(lambda: a.wait_lg_emit(("tr", 3))))
    q += dma_typed(6)
    a.wait_lg_emit([("x", k) for s_ in range(3) for k in STEPS[s_].xkeys() if k[0] == "s"])
    emit_gaps(mf_list(0, "R") + mf_list(1, "R") + mf_list(2, "R"), q, h12[36:] + hs_ops(3))
    for s_ in range(3):
        xw.release_after(s_)
    if OPT.get("fb"): stamp(a, "R012 done")

    extra = {si: [] for si in range(NST)}
    for s0, nxt in ((0, 16), (16, 32)):
        ks = STEPS[nxt].xkeys()
        raw = [k for k in ks if k[0] != "s"]
        sm = [k for k in ks if k[0] == "s"]
        for n, k in enumerate(raw):
            extra[s0 + 5 + (n * 10) // len(raw)].append(k)
        for n, k in enumerate(sm):
            extra[s0 + 13 + n // 3].append(k)
    all_extra = {e for ee in extra.values() for e in ee}
    barrier_at = {13, 29}
    adjobs = {}
    for seg, first_step in (("B", 3), ("Pr", 18)):
        for bi, blk in enumerate(blocks(seg)):
            adjobs.setdefault(first_step + (bi * 9) // 10, []).append((bi, blk))

    POI_AT = list(OPT.get("poi", (6, 10, 14, 18, 22)))
    FLAG_AT = OPT.get("flagat", (29,))[0]
    FLAGLD_AT = OPT.get("flagld", (33,))[0]
    assert FLAG_AT in barrier_at and max(POI_AT) + 3 <= FLAG_AT
    PF_AT = {4: (vPFA, 24 * TAPB), 8: (vPFA, 18432), 12: (vPFA, 8 * TAPB + 18432), 16: (vPFA, 16 * TAPB + 18432),
             20: (vPFA, 24 * TAPB + 18432), 24: (vPFP, 0)}
    for d in range(4):
        a.i(f"v_mov_b32 v{vPOI+d}, -1")

    def wo_dma():
        out = []
        for k in range(11):
            if k % 4 == 0:
                out.append(SW(lambda k=k: a.i(f"s_add_u32 m0, s{sT3}, {k*1024}")))
                out.append(SW(lambda k=k: a.i(f"s_add_u32 s{sT2}, s{sT1}, {k*1024}")))
            out.append(typed(lambda k=k: a.vmem(
                f"buffer_load_dwordx4 v{vWOA}, s[{S_WO}:{S_WO+3}], s{sT2} offen offset:{(k % 4)*1024} lds", "wo"), "d"))
        return out

    for si in range(3, NST):
        st = STEPS[si]
        if si == 10:
            diag_delay(a, 3)
        if si in OPT.get("stamp_steps", (4, 16, 32)):
            stamp(a, f"step {si}")
        mem = []
        if si in barrier_at:
            b1 = SW(lambda: a.lg_all()); b1.isbar = True
            b2 = SW(lambda: a.i("s_barrier")); b2.isbar = True
            mem += [b1, b2]
        prev = adjobs.get(si - 1, [])
        cur = adjobs.get(si, [])
        if si + 4 < NST and not OPT.get("dmalate"):
            mem += dma_typed(si + 4)
        mem += [typed(ad_mfma(bi), "m") for bi, blk in prev]
        if si + 2 < NST:
            mem.append(SW(lambda n=si + 2: a.wait_vm_emit(("w", n))))
            if not OPT.get("notr"):
                mem += T(tr_reads(si + 2), "l")
        if si + 1 < NST:
            for k in STEPS[si + 1].xkeys():
                if k not in loaded and k not in all_extra:
                    loaded.add(k)
                    mem.append(typed(x_read(k), "l"))
        for k in extra[si]:
            if k not in loaded:
                loaded.add(k)
                mem.append(typed(x_read(k), "l"))
        if si + 4 < NST and OPT.get("dmalate"):
            mem += dma_typed(si + 4)
        if si in PF_AT and not OPT.get("nowpf") and not OPT.get("pfpro"):
            mem += w_pf(*PF_AT[si])
        if si in POI_AT and not OPT.get("nopoison"):
            m = 2 * POI_AT.index(si)
            mem.append(SW(lambda m=m: a.i(f"s_mov_b32 s{sT1}, {m*18432}")))
            mem.append(typed(lambda m=m: a.vmem(
                f"buffer_store_dwordx4 v[{vPOI}:{vPOI+3}], v{vHB if m == 8 else vHA}, s[{S_WS}:{S_WS+3}], s{sT1} offen sc1", "poison"), "d"))
        if si == FLAG_AT:
            mem.append(typed(lambda: a.vmem(
                f"buffer_store_dword v{vTAG}, v{vFLG}, s[{S_WS}:{S_WS+3}], 0 offen sc1", "flagst"), "d"))
        if si == FLAGLD_AT:
            mem.append(typed(lambda: a.vmem(
                f"buffer_load_dword v{vFLV}, v{vFLT}, s[{S_WS}:{S_WS+3}], 0 offen sc1", "flagld"), "d"))
        hv = hs_ops(si + 1) if si + 1 < NST else []
        adv, writes = [], []
        for bi, blk in prev:
            c1, c2, w = ad_fin(bi, blk)
            adv += [c1, c2]
            writes.append(w)
        mem += [typed(ad_read(bi, blk), "l") for bi, blk in cur]
        if si == NST - 2:
            a.i(f"s_mul_i32 s{sT1}, s{sWAVE}, 11264")
            a.i(f"s_add_u32 s{sT3}, s{sT1}, {L_WO}")
            a.i(f"v_lshlrev_b32 v{vWOA}, 4, v{vLANE}")
        if si == NST - 1:
            mem = [SW(lambda: a.i("s_barrier"))] + wo_dma()
        val = hv[:10] + adv + writes + hv[10:]
        if si == 27:
            tsu = tail_setup_ops(a)
        if si >= 27:
            take = {27: 8, 28: 8, 29: 6, 30: 44, 31: 0, 32: 8, 33: 8, 34: 8}.get(si, len(tsu))
            val = val + tsu[:take]
            tsu = tsu[take:]
        if OPT.get("noval"): val = adv + writes
        if OPT.get("nodma"): mem = [f for f in mem if f.t != "d"]
        if OPT.get("nolds"): keep_x = True
        if OPT.get("nobar"): mem = [f for f in mem if not getattr(f, "isbar", False)]
        need = [("x", k) for k in st.xkeys()] + [("tr", si), ("tr", si + 1)]
        a.wait_lg_emit(need)
        if si == NST - 1:
            a.lg_all()
        emit_gaps(mf_list(si, "PQR"), mem, val)
        xw.release_after(si)

    stamp(a, "loop end")
    diag_delay(a, 1)
    gen_tail(a)
    diag_delay(a, 2)
    stamp(a, "done")
    stamp_flush(a)
    a.label("L_end")
    a.i("s_endpgm")


tF, tG, tFQ, tGQ, tWO, tWO4, tZW, tZQ, tZR, tZR4, tOUT, tOUT4, tSLO, tSLP, tSEED = range(128, 143)
tCF, tCG, tC1 = 104, 106, 108
sU0, sU1, sU2, sU3 = 4, 5, 6, 7
sC60 = 8
ZP = 4608


def tail_setup_ops(a):
    L = []

    def I(x):
        L.append(lambda x=x: a.i(x))
    I(f"s_mul_i32 s{sU0}, s{sT}, {H_TEAM}")
    I(f"s_mul_i32 s{sU1}, s{sJ}, 18432")
    I(f"s_add_u32 s{sU0}, s{sU0}, s{sU1}")
    I(f"s_lshl_b32 s{sU1}, s{sKH}, 10")
    I(f"s_add_u32 s{sU0}, s{sU0}, s{sU1}")
    I(f"s_add_u32 s{sU0}, s{sU0}, {H_OFF}")
    I(f"s_lshl_b32 s{sU1}, s{sCH}, 12")
    I(f"s_add_u32 s{sU1}, s{sU1}, s{sU0}")
    I(f"v_lshlrev_b32 v4, 8, v{vG}")
    I(f"v_lshlrev_b32 v5, 4, v{vR}")
    I(f"v_add3_u32 v{tF}, v4, v5, s{sU1}")
    I(f"v_lshrrev_b32 v6, 1, v{vG}")
    I("v_lshlrev_b32 v6, 10, v6")
    I(f"v_add_u32 v6, v6, v{tF}")
    I(f"v_add_u32 v{tG}, {4*2048+512}, v6")
    I(f"s_lshl_b32 s{sU1}, s{sCH}, 8")
    I(f"s_add_u32 s{sU1}, s{sU1}, s{sU0}")
    I(f"v_lshlrev_b32 v6, 2, v{vG}")
    I(f"v_add3_u32 v6, v5, v6, s{sU1}")
    I(f"v_add_u32 v{tFQ}, {4*2048}, v6")
    I(f"v_add_u32 v{tGQ}, {8*2048+512}, v6")
    I(f"v_lshlrev_b32 v4, 3, v{vG}")
    I(f"v_lshrrev_b32 v5, 2, v{vR}")
    I("v_add_u32 v4, v4, v5")
    I("v_mul_u32_u24 v4, 288, v4")
    I(f"v_and_b32 v6, 3, v{vR}")
    I("v_lshlrev_b32 v6, 3, v6")
    I(f"s_lshl_b32 s{sU0}, s{sCH}, 7")
    I(f"s_add_u32 s{sU0}, s{sU0}, {L_WO}")
    I(f"v_add3_u32 v{tWO}, v4, v6, s{sU0}")
    I(f"v_lshlrev_b32 v4, 2, v{vG}")
    I("v_add_u32 v4, v4, v5")
    I("v_mul_u32_u24 v4, 288, v4")
    I(f"s_add_u32 s{sU0}, s{sU0}, {128*288}")
    I(f"v_add3_u32 v{tWO4}, v4, v6, s{sU0}")
    I(f"s_mul_i32 s{sU0}, s{sKH}, {ZP}")
    I(f"s_add_u32 s{sU0}, s{sU0}, {L_Z}")
    I(f"s_lshl_b32 s{sU1}, s{sCH}, 11")
    I(f"s_add_u32 s{sU1}, s{sU1}, s{sU0}")
    I(f"v_lshlrev_b32 v4, 4, v{vLANE}")
    I(f"v_add_u32 v{tZW}, s{sU1}, v4")
    I(f"v_add_u32 v{tZR}, s{sU0}, v4")
    I(f"s_mul_i32 s{sU2}, s{sWAVE}, 9216")
    I(f"v_add_u32 v{tSLO}, s{sU2}, v4")
    I(f"s_xor_b32 s{sU2}, s{sWAVE}, 2")
    I(f"s_mul_i32 s{sU2}, s{sU2}, 9216")
    I(f"v_add_u32 v{tSLP}, s{sU2}, v4")
    I(f"v_lshrrev_b32 v6, 1, v{vG}")
    I(f"s_lshl_b32 s{sU1}, s{sCH}, 1")
    I(f"v_add_u32 v6, s{sU1}, v6")
    I("v_lshlrev_b32 v6, 7, v6")
    I(f"v_lshlrev_b32 v7, 3, v{vR}")
    I("v_add_u32 v6, v6, v7")
    I(f"v_and_b32 v7, 1, v{vG}")
    I("v_lshlrev_b32 v7, 2, v7")
    I(f"s_add_u32 s{sU1}, s{sU0}, 4096")
    I(f"v_add3_u32 v{tZQ}, v6, v7, s{sU1}")
    I(f"v_lshlrev_b32 v6, 3, v{vLANE}")
    I(f"v_add_u32 v{tZR4}, s{sU1}, v6")
    I(f"s_add_u32 s{sU0}, s{sN0}, s{sJ}")
    I(f"v_mul_u32_u24 v4, 9, v{vR}")
    I(f"v_add_u32 v4, s{sU0}, v4")
    I(f"s_mul_i32 s{sU1}, s{sTAU}, 143")
    I(f"v_cmp_gt_i32 s[{sU2}:{sU3}], s{sU1}, v4")
    I("v_lshlrev_b32 v5, 2, v4")
    I(f"s_lshl_b32 s{sU1}, s{sKH}, 1")
    I(f"s_add_u32 s{sU1}, s{sU1}, s{sPAR}")
    I(f"v_add_u32 v5, s{sU1}, v5")
    I("v_mul_u32_u24 v5, 288, v5")
    I(f"v_and_b32 v6, 1, v{vG}")
    I("v_lshlrev_b32 v6, 5, v6")
    I(f"v_lshrrev_b32 v7, 1, v{vG}")
    I("v_lshlrev_b32 v7, 4, v7")
    I("v_add3_u32 v5, v5, v6, v7")
    I(f"s_lshl_b32 s{sU1}, s{sCH}, 7")
    I(f"v_add_u32 v5, s{sU1}, v5")
    I("v_mov_b32 v6, 0x7fffffff")
    I(f"v_cndmask_b32 v{tOUT}, v5, v6, s[{sU2}:{sU3}]")
    I(f"v_and_b32 v7, 1, v{vG}")
    I("v_cmp_eq_u32 vcc, 1, v7")
    I(f"v_mov_b32 v{tC1}, 1.0")
    I(f"v_mov_b32 v{tC1+1}, 1.0")
    I(f"v_cndmask_b32 v{tOUT4}, v{tOUT}, v6, vcc")
    I(f"s_lshl_b32 s{sU0}, s{sT}, 8")
    I(f"s_add_u32 s{sU0}, s{sU0}, 128")
    I(f"v_mov_b32 v4, s{sU0}")
    I(f"v_or_b32 v5, s{sWAVE}, v{vLANE}")
    I(f"v_or_b32 v5, s{sJ}, v5")
    I("v_cmp_eq_u32 vcc, 0, v5")
    I(f"v_mov_b32 v{tCF}, 0xc038aa3b")
    I(f"v_mov_b32 v{tCF+1}, 0xc038aa3b")
    I(f"v_cndmask_b32 v{tSEED}, v6, v4, vcc")
    I(f"v_mov_b32 v{tCG}, 0xbfb8aa3b")
    I(f"v_mov_b32 v{tCG+1}, 0xbfb8aa3b")
    I(f"s_mov_b32 s{sC60}, 0x42700000")
    return L


def gen_tail(a):
    P, Q, R = ACC["P"], ACC["Q"], ACC["R"]
    S = 24
    HP = 60

    def pk(d, x, y, neg=False):
        a.i(f"v_pk_add_f32 v[{d}:{d+1}], v[{x}:{x+1}], v[{y}:{y+1}]" + (" neg_lo:[0,1] neg_hi:[0,1]" if neg else ""))

    def y0(dst):
        for d in range(4):
            if dst != P:
                a.i(f"v_mov_b32 v{dst+d}, v{P+d}")
        for m in range(1, 9):
            for d in (0, 2):
                pk(dst + 4 * m + d, P + 4 * m + d, Q + 4 * m - 4 + d)
        for d in range(4):
            a.i(f"v_add_f32_dpp v{dst+d}, v{Q+32+d}, v{P+d} row_shr:1 row_mask:0xf bank_mask:0xf")

    def y1():
        for m in range(9):
            for d in (0, 2):
                pk(R + 4 * m + d, R + 4 * m + d, P + 4 * m + d, True)
            for d in (0, 2):
                pk(R + 4 * m + d, R + 4 * m + d, Q + 4 * m + d, True)

    a.wait_vm_emit("flagld")
    a.i(f"v_cmp_ne_u32 vcc, v{vFLV}, v{vTAG}")
    a.i("s_nop 4")
    a.i("s_cbranch_vccz L_flagok")
    a.i("s_mov_b32 s63, 0")
    a.label("L_flagpoll")
    a.i(f"buffer_load_dword v{vFLV}, v{vFLT}, s[{S_WS}:{S_WS+3}], 0 offen sc1")
    a.i("s_add_u32 s63, s63, 1")
    a.i("s_waitcnt vmcnt(0)")
    a.i(f"v_cmp_ne_u32 vcc, v{vFLV}, v{vTAG}")
    a.i("s_sleep 1")
    a.i("s_nop 3")
    a.i("s_cbranch_vccz L_flagok")
    a.i("s_cmp_lt_u32 s63, 0x40000")
    a.i("s_cbranch_scc1 L_flagpoll")
    a.label("L_flagok")
    a.i(f"s_cmp_eq_u32 s{sKH}, 0")
    a.i("s_cbranch_scc0 L_red1")
    vm_before = list(a.vm)
    for kh in range(2):
        a.vm = list(vm_before)
        if kh == 0:
            y1()
            send, keep = R, P
        else:
            a.label("L_red1")
            y0(S)
            send, keep = S, R
        for m in range(9):
            a.i(f"ds_write_b128 v{tSLO}, {vr(send+4*m)} offset:{L_SLAB + 1024*m}")
        if kh == 0:
            y0(P)
        else:
            y1()
        a.wait_vm_emit("wo")
        a.i("s_waitcnt lgkmcnt(0)")
        a.i("s_barrier")
        for m in range(9):
            a.i(f"ds_read_b128 {vr(Q+4*m)}, v{tSLP} offset:{L_SLAB + 1024*m}")
        for m in range(9):
            a.i(f"s_waitcnt lgkmcnt({8-m})")
            pk(P + 4 * m, keep + 4 * m, Q + 4 * m)
            pk(P + 4 * m + 2, keep + 4 * m + 2, Q + 4 * m + 2)
            a.i(f"v_cvt_pk_bf16_f32 v{HP+2*m}, v{P+4*m}, v{P+4*m+1}")
            a.i(f"v_cvt_pk_bf16_f32 v{HP+2*m+1}, v{P+4*m+2}, v{P+4*m+3}")
            if m % 2 == 1:
                r0 = HP + 2 * (m - 1)
                a.i(f"s_mov_b32 s{sT1}, {(m-1)*18432}")
                a.i("s_nop 0")
                a.i(f"v_permlane16_swap_b32 v{r0}, v{r0+2}")
                a.i(f"v_permlane16_swap_b32 v{r0+1}, v{r0+3}")
                a.vmem(f"buffer_store_dwordx4 {vr(r0)}, v{vHA}, s[{S_WS}:{S_WS+3}], s{sT1} offen sc1", "hs")
        if kh == 0:
            a.i("s_branch L_red2")
    a.label("L_red2")
    r0 = HP + 16
    a.i(f"v_mov_b32 v{r0+2}, 0")
    a.i(f"v_mov_b32 v{r0+3}, 0")
    a.i(f"s_mov_b32 s{sT1}, {8*18432}")
    a.i("s_nop 0")
    a.i(f"v_permlane16_swap_b32 v{r0}, v{r0+2}")
    a.i(f"v_permlane16_swap_b32 v{r0+1}, v{r0+3}")
    a.vmem(f"buffer_store_dwordx4 {vr(r0)}, v{vHB}, s[{S_WS}:{S_WS+3}], s{sT1} offen sc1", "hs")
    stamp(a, "h stores issued")
    a.vmem(f"buffer_store_dword v{vTAG}, v{tSEED}, s[{S_WS}:{S_WS+3}], 0 offen sc1", "seed")
    F = (80, 88)
    Gr = (84, 92)
    FQ, GQ = 96, 97

    def poll_loads():
        for s in range(2):
            a.i(f"buffer_load_dwordx4 {vr(F[s])}, v{tF}, s[{S_WS}:{S_WS+3}], 0 offen offset:{s*2048} sc1")
            a.i(f"buffer_load_dwordx4 {vr(Gr[s])}, v{tG}, s[{S_WS}:{S_WS+3}], 0 offen offset:{s*2048} sc1")
        a.i(f"buffer_load_dword v{FQ}, v{tFQ}, s[{S_WS}:{S_WS+3}], 0 offen sc1")
        a.i(f"buffer_load_dword v{GQ}, v{tGQ}, s[{S_WS}:{S_WS+3}], 0 offen sc1")

    def wo_reads(ts):
        for t in ts:
            for ks in range(4):
                for h in range(2):
                    d = 18 * t + 4 * ks + 2 * h
                    a.i(f"ds_read_b64_tr_b16 a[{d}:{d+1}], v{tWO} offset:{ks*9216 + h*1152 + t*32}")
            d = 18 * t + 16
            a.i(f"ds_read_b64_tr_b16 a[{d}:{d+1}], v{tWO4} offset:{t*32}")
    npre = OPT.get("wopre", (5,))[0]
    wo_reads(range(npre))
    if not OPT.get("nopollack"):
        a.i("s_waitcnt vmcnt(0)")
    for _ in range(OPT.get("polldelay", (0,))[0]):
        a.i("s_sleep 4")
    if OPT.get("xst"): stamp(a, "tr issued")
    a.i("s_mov_b32 s63, 0")
    poll_loads()
    wo_reads(range(npre, 5))
    a.i("s_branch L_hpollw")
    a.label("L_hpoll")
    poll_loads()
    a.label("L_hpollw")
    a.i("s_add_u32 s63, s63, 1")
    a.i("s_waitcnt vmcnt(0)")
    a.i("v_max3_u32 v40, v80, v81, v82")
    a.i("v_max3_u32 v41, v83, v84, v85")
    a.i("v_max3_u32 v42, v86, v87, v88")
    a.i("v_max3_u32 v43, v89, v90, v91")
    a.i("v_max3_u32 v44, v92, v93, v94")
    a.i("v_max3_u32 v45, v95, v96, v97")
    a.i("v_max3_u32 v40, v40, v41, v42")
    a.i("v_max3_u32 v43, v43, v44, v45")
    a.i("v_max_u32 v40, v40, v43")
    a.i("v_cmp_eq_u32 vcc, -1, v40")
    a.i("s_cmp_lt_u32 s63, 0x40000")
    a.i("s_cselect_b64 s[96:97], -1, 0")
    a.i("s_nop 2")
    a.i("s_and_b64 vcc, vcc, s[96:97]")
    a.i("s_cbranch_vccnz L_hpoll")
    a.vm = []
    stamp(a, "h loaded")
    if OPT["stamps"]:
        a.i(f"s_mov_b32 s{S_ST+31}, s63")
    Z = 48

    def gate_ops(fregs, gregs, zdst, A, B, D):
        nd = len(fregs)
        L = []
        for d in range(nd):
            L.append(f"v_lshlrev_b32 v{A+2*d}, 16, v{fregs[d]}")
            L.append(f"v_and_b32 v{A+2*d+1}, s{sMASK}, v{fregs[d]}")
            L.append(f"v_lshlrev_b32 v{B+2*d}, 16, v{gregs[d]}")
            L.append(f"v_and_b32 v{B+2*d+1}, s{sMASK}, v{gregs[d]}")
        for d in range(nd):
            L.append(f"v_pk_mul_f32 v[{A+2*d}:{A+2*d+1}], v[{A+2*d}:{A+2*d+1}], v[{tCF}:{tCF+1}]")
        for d in range(nd):
            L.append(f"v_pk_mul_f32 v[{B+2*d}:{B+2*d+1}], v[{B+2*d}:{B+2*d+1}], v[{tCG}:{tCG+1}]")
        for e in range(2 * nd):
            L.append(f"v_min_f32 v{A+e}, s{sC60}, v{A+e}")
        for e in range(2 * nd):
            L.append(f"v_exp_f32 v{B+e}, v{B+e}")
        for e in range(2 * nd):
            L.append(f"v_exp_f32 v{A+e}, v{A+e}")
        L.append("s_nop 0")
        for d in range(nd):
            L.append(f"v_pk_add_f32 v[{D+2*d}:{D+2*d+1}], v[{A+2*d}:{A+2*d+1}], v[{tC1}:{tC1+1}]")
        for d in range(nd):
            L.append(f"v_pk_fma_f32 v[{D+2*d}:{D+2*d+1}], v[{D+2*d}:{D+2*d+1}], v[{B+2*d}:{B+2*d+1}], v[{D+2*d}:{D+2*d+1}]")
        for e in range(2 * nd):
            L.append(f"v_rcp_f32 v{D+e}, v{D+e}")
        for d in range(nd):
            L.append(f"v_pk_add_f32 v[{A+2*d}:{A+2*d+1}], v[{tC1}:{tC1+1}], v[{A+2*d}:{A+2*d+1}] neg_lo:[0,1] neg_hi:[0,1]")
        L.append("s_nop 0")
        for d in range(nd):
            L.append(f"v_pk_mul_f32 v[{A+2*d}:{A+2*d+1}], v[{A+2*d}:{A+2*d+1}], v[{D+2*d}:{D+2*d+1}]")
        for d in range(nd):
            L.append(f"v_cvt_pk_bf16_f32 v{zdst+d}, v{A+2*d}, v{A+2*d+1}")
        return L

    for s in range(2):
        for x in gate_ops([F[s] + d for d in range(4)], [Gr[s] + d for d in range(4)], Z + 4 * s, 24, 32, 40):
            a.i(x)
        a.i(f"ds_write_b128 v{tZW}, {vr(Z+4*s)} offset:{1024*s}")
    for x in gate_ops([FQ], [GQ], Z + 8, 24, 32, 40):
        a.i(x)
    a.i(f"ds_write_b32 v{tZQ}, v{Z+8}")
    a.lg_all()
    a.i("s_barrier")
    stamp(a, "gated")
    ZF = 60
    for ks in range(4):
        a.i(f"ds_read_b128 {vr(ZF+4*ks)}, v{tZR} offset:{1024*ks}")
    a.i(f"ds_read_b64 v[{ZF+16}:{ZF+17}], v{tZR4}")
    O, PK = 24, 44
    fl = OPT.get("outflag", "")
    a.i("s_waitcnt lgkmcnt(0)")

    def tile(t):
        for ks in range(4):
            c = "0" if ks == 0 else vr(O + 4 * t)
            a.i(f"v_mfma_f32_16x16x32_bf16 {vr(O+4*t)}, {ar(18*t+4*ks)}, {vr(ZF+4*ks)}, {c}")

    def tile_end(t):
        a.i(f"v_mfma_f32_16x16x16_bf16 {vr(O+4*t)}, a[{18*t+16}:{18*t+17}], v[{ZF+16}:{ZF+17}], {vr(O+4*t)}")

    def pack(t):
        a.i(f"v_cvt_pk_bf16_f32 v{PK+2*t}, v{O+4*t}, v{O+4*t+1}")
        a.i(f"v_cvt_pk_bf16_f32 v{PK+2*t+1}, v{O+4*t+2}, v{O+4*t+3}")

    def store(t, addr):
        r0 = PK + 2 * t
        a.i("s_nop 1")
        a.i(f"v_permlane16_swap_b32 v{r0}, v{r0+2}")
        a.i(f"v_permlane16_swap_b32 v{r0+1}, v{r0+3}")
        a.i(f"buffer_store_dwordx4 {vr(r0)}, v{addr}, s[{S_OUT}:{S_OUT+3}], 0 offen offset:{32*t}{fl}")
    a.i(f"v_mov_b32 v{PK+10}, 0")
    a.i(f"v_mov_b32 v{PK+11}, 0")
    tile(0); tile(1); tile(2)
    tile_end(0); tile(3); tile_end(1); tile(4); tile_end(2); tile_end(3)
    pack(0); pack(1)
    tile_end(4)
    store(0, tOUT)
    pack(2); pack(3)
    store(2, tOUT)
    pack(4)
    store(4, tOUT4)
    if OPT["stamps"]:
        a.i("s_waitcnt vmcnt(0)")


def build():
    a = Asm()
    a.raw(f"; @launch grid=(256,1,1) block=(256,1,1) lds={LDS_MAIN}")
    a.raw('.amdgcn_target "amdgcn-amd-amdhsa--gfx950"\n.text')
    a.raw(f".globl {KNAME}\n.p2align 8\n.type {KNAME},@function")
    gen_kernel(a)
    a.raw('.section .rodata,"a"')
    a.raw(kd(KNAME, 512, 256))
    return a.text()


if __name__ == "__main__":
    out = sys.argv[1] if len(sys.argv) > 1 else "m4.s"
    for k in sys.argv[2:]:
        if k.startswith("outflag="):
            OPT["outflag"] = " " + k.split("=")[1].replace("+", " ")
        elif "=" in k:
            kk, vv = k.split("=")
            OPT[kk] = tuple(int(x) for x in vv.split(","))
        else:
            OPT[k] = True
    open(out, "w").write(build())
    print("wrote", out)
```

```python
import sys
from asmlib import Asm, vr, ar, kd

KNAME = "standalone__autoregressive_conv_wavenet__speech_kernel"

XROWS = 159
XB = XROWS * 288
L_X0, L_X1, L_XS = 0, XB, 2 * XB
L_RING = 3 * XB
RSLOTS = 6
LDS_MAIN = L_RING + 4 * RSLOTS * 1024
TAPB = 82944
W_BYTES = 31 * TAPB
H_OFF = 0x100000
H_TEAM = 9 * 9 * 2048
L_SLAB, L_WO, L_Z = 0, 36864, 36864 + 49152

S_X, S_W, S_WO, S_OUT, S_WS = 16, 20, 24, 28, 32
sT, sJ, sTAU, sSEQ, sPAR, sB, sWAVE, sCH, sKH, sN0, sRING, sMASK = 36, 37, 38, 39, 40, 41, 42, 43, 44, 45, 46, 47
sI, sTAG = 48, 49
sT0, sT1, sT2, sT3 = 50, 51, 52, 53
sSOFF, sTAP, sTAP3 = 54, 55, 56
sSLOT = 57
S_ST = 64

vLANE, vR, vG = 1, 2, 3
vXB = {"0": 10, "1": 11, "s": 12}
vPB = {"0": 13, "1": 14, "s": 15}
vWD, vWP, vTR, vXA, vXW, vXD = 16, 17, 18, 19, 20, 21
vS = 24
vH0 = (28, 32, 92)
vH1 = (36, 40, 96)
vHS = (44, 48, 144)
vHT = 52
vAD = (68, 72)
vAB = (76, 80)
vAC = (84, 86)
vXA2, vXW2, vXA3, vXW3 = 88, 89, 90, 91
vHA, vHB = 100, 101
vWOA = 103
vFLG, vFLT, vFLV, vTAG = 22, 23, 9, 8
vPFA, vPFP, vPOI, vPOI2 = 0, 102, 104, 84
sC73, sPFO = 63, 100
vW2, vW2L = 86, 87
ACC = {"P": 148, "Q": 184, "R": 220}

OPT = dict(stamps=False, dbg=False, proto="poison")
NSTAMP = [0]


def stamp(a, name, first=False):
    if not OPT["stamps"]:
        return
    k = 0 if first else NSTAMP[0]
    NSTAMP[0] = k + 1
    assert k < 16
    a.i("s_memrealtime s[96:97]")
    a.i("s_memtime s[98:99]")
    a.i("s_waitcnt lgkmcnt(0)")
    a.lg = []
    a.i(f"s_mov_b32 s{S_ST+2*k}, s96")
    a.i(f"s_mov_b32 s{S_ST+2*k+1}, s98")
    a.c(f"stamp {k}: {name}")


def stamp_flush(a):
    if not OPT["stamps"]:
        return
    n = NSTAMP[0]
    for k in range(2 * n):
        a.i(f"v_writelane_b32 v4, s{S_ST+k}, {k}")
    a.i(f"v_writelane_b32 v4, s{S_ST+31}, 31")
    a.i("s_lshl_b32 s96, s2, 7")
    a.i("s_add_u32 s96, s96, 0x800000")
    a.i(f"v_lshlrev_b32 v5, 2, v{vLANE}")
    a.i("v_add_u32 v5, s96, v5")
    a.i(f"v_cmp_gt_u32 vcc, 32, v{vLANE}")
    a.i(f"s_cmp_eq_u32 s{sWAVE}, 0")
    a.i("s_cselect_b64 s[96:97], -1, 0")
    a.i("s_and_b64 vcc, vcc, s[96:97]")
    a.i("v_mov_b32 v6, 0x7fffffff")
    a.i("v_cndmask_b32 v5, v6, v5, vcc")
    a.i(f"buffer_store_dword v4, v5, s[{S_WS}:{S_WS+3}], 0 offen")
    if OPT["dbg"]:
        for k in range(n):
            a.i(f"s_sub_u32 s96, s{S_ST+2*k}, s{S_ST}")
            a.i(f"v_writelane_b32 v4, s96, {k}")
        a.i("s_mov_b32 s96, s12")
        a.i("s_and_b32 s97, s13, 0xffff")
        a.i("s_mov_b32 s98, 256")
        a.i("s_mov_b32 s99, 0x20000")
        a.i(f"v_lshlrev_b32 v5, 2, v{vLANE}")
        a.i(f"v_cmp_gt_u32 vcc, {n}, v{vLANE}")
        a.i(f"s_cmp_eq_u32 s{sWAVE}, 0")
        a.i("s_cselect_b64 s[62:63], -1, 0")
        a.i("s_and_b64 vcc, vcc, s[62:63]")
        a.i("s_cmp_eq_u32 s2, 8")
        a.i("s_cselect_b64 s[62:63], -1, 0")
        a.i("s_and_b64 vcc, vcc, s[62:63]")
        a.i("v_cndmask_b32 v5, v6, v5, vcc")
        a.i("buffer_store_dword v4, v5, s[96:99], 0 offen")
    a.i("s_waitcnt vmcnt(0)")


def srd(a, s, base, nbytes):
    a.i(f"s_mov_b32 s{s}, s{base}")
    a.i(f"s_and_b32 s{s+1}, s{base+1}, 0xffff")
    a.i(f"s_mov_b32 s{s+2}, {nbytes}")
    a.i(f"s_mov_b32 s{s+3}, 0x20000")


def decode_wg(a, exit_label):
    a.i("s_cmp_ge_u32 s2, 256")
    a.i(f"s_cbranch_scc1 {exit_label}")
    a.i(f"s_and_b32 s{sT0}, s2, 7")
    a.i(f"s_lshl_b32 s{sT0}, s{sT0}, 5")
    a.i(f"s_lshr_b32 s{sT1}, s2, 3")
    a.i(f"s_add_u32 s{sI}, s{sT0}, s{sT1}")
    a.i(f"s_cmp_ge_u32 s{sI}, 252")
    a.i(f"s_cbranch_scc1 {exit_label}")
    a.i("s_load_dwordx4 s[4:7], s[0:1], 0")
    a.i("s_load_dwordx4 s[8:11], s[0:1], 16")
    a.i("s_load_dwordx4 s[12:15], s[0:1], 32")
    a.i(f"s_mul_i32 s{sT}, s{sI}, 7282")
    a.i(f"s_lshr_b32 s{sT}, s{sT}, 16")
    a.i(f"s_mul_i32 s{sT0}, s{sT}, 9")
    a.i(f"s_sub_u32 s{sJ}, s{sI}, s{sT0}")
    a.i(f"s_mul_i32 s{sSEQ}, s{sT}, 9363")
    a.i(f"s_lshr_b32 s{sSEQ}, s{sSEQ}, 16")
    a.i(f"s_mul_i32 s{sT0}, s{sSEQ}, 7")
    a.i(f"s_sub_u32 s{sTAU}, s{sT}, s{sT0}")
    a.i(f"s_and_b32 s{sPAR}, s{sSEQ}, 1")
    a.i(f"s_lshr_b32 s{sB}, s{sSEQ}, 1")
    a.i(f"s_mul_i32 s{sN0}, s{sTAU}, 143")
    a.i(f"s_sub_u32 s{sN0}, s{sN0}, 1")
    a.i("v_lshrrev_b32 v4, 6, v0")
    a.i(f"v_and_b32 v{vLANE}, 63, v0")
    a.i(f"v_readfirstlane_b32 s{sWAVE}, v4")
    a.i(f"v_and_b32 v{vR}, 15, v{vLANE}")
    a.i(f"v_lshrrev_b32 v{vG}, 4, v{vLANE}")
    a.i(f"s_and_b32 s{sCH}, s{sWAVE}, 1")
    a.i(f"s_lshr_b32 s{sKH}, s{sWAVE}, 1")
    a.i(f"s_mul_i32 s{sT0}, s{sB}, 1152000")


def make_srds(a):
    a.i("s_waitcnt lgkmcnt(0)")
    a.i(f"s_add_u32 s{S_X}, s4, s{sT0}")
    a.i(f"s_addc_u32 s{S_X+1}, s5, 0")
    a.i(f"s_and_b32 s{S_X+1}, s{S_X+1}, 0xffff")
    a.i(f"s_mov_b32 s{S_X+2}, 1152000")
    a.i(f"s_mov_b32 s{S_X+3}, 0x20000")
    srd(a, S_W, 6, W_BYTES)
    srd(a, S_WO, 8, 41472)
    a.i(f"s_add_u32 s{S_OUT}, s10, s{sT0}")
    a.i(f"s_addc_u32 s{S_OUT+1}, s11, 0")
    a.i(f"s_and_b32 s{S_OUT+1}, s{S_OUT+1}, 0xffff")
    a.i(f"s_mov_b32 s{S_OUT+2}, 1152000")
    a.i(f"s_mov_b32 s{S_OUT+3}, 0x20000")
    srd(a, S_WS, 14, 0x10000000)


class Step:
    def __init__(self, seg, j):
        self.seg, self.j = seg, j
        self.hasQ = not (seg in "AB" and j == 15)
        self.items = []
        if seg in ("A", "B"):
            so = 18432 if seg == "B" else 0
            self.items.append(("H0", 2 * j * TAPB + so, vWD))
            if self.hasQ:
                self.items.append(("H1", (2 * j + 1) * TAPB + so, vWD))
            self.shift = j
        else:
            self.items.append(("H0", 4 * j * TAPB, vWP))
            self.items.append(("H1", (4 * j + 1) * TAPB, vWP))
            self.shift = 2 * j

    def xkeys(self):
        ks = []
        for seq in ("0", "1", "s"):
            if seq == "1" and not self.hasQ:
                continue
            for m in range(9):
                ks.append((seq, self.seg, m - self.shift))
        return ks


STEPS = [Step("A", j) for j in range(16)] + [Step("B", j) for j in range(16)] + [Step("Pr", j) for j in range(4)]
NST = len(STEPS)


def x_addr(key):
    seq, seg, q = key
    if seg == "Pr":
        return vPB[seq], (q + 15) * 288
    return vXB[seq], (q + 15) * 288 + (64 if seg == "B" else 0)


class XWin:
    def __init__(self):
        self.pool = {"0": list(range(0, 21)), "1": list(range(21, 42)), "s": list(range(42, 63))}
        self.slot = {}
        self.last = {}
        for si, st in enumerate(STEPS):
            for k in st.xkeys():
                self.last[k] = si

    def alloc(self, key):
        s = self.pool[key[0]].pop(0)
        self.slot[key] = s
        return s * 4

    def reg(self, key):
        return self.slot[key] * 4

    def release_after(self, si):
        for k, s in list(self.slot.items()):
            if self.last[k] == si:
                self.pool[k[0]].append(s)
                del self.slot[k]


def hs_valu(h0, h1, hs):
    st = []
    for stage in range(7):
        for d in range(4):
            t = vHT + 4 * d
            st.append([f"v_lshlrev_b32 v{t}, 16, v{h0+d}", f"v_lshlrev_b32 v{t+1}, 16, v{h1+d}",
                       f"v_and_b32 v{t+2}, s{sMASK}, v{h0+d}", f"v_and_b32 v{t+3}, s{sMASK}, v{h1+d}",
                       f"v_add_f32 v{t}, v{t}, v{t+1}", f"v_add_f32 v{t+2}, v{t+2}, v{t+3}",
                       f"v_cvt_pk_bf16_f32 v{hs+d}, v{t}, v{t+2}"][stage])
    return st


def w_granule_kk(a, dst):
    a.i(f"v_lshrrev_b32 v4, 3, v{vLANE}")
    a.i("v_lshrrev_b32 v5, 2, v4")
    a.i("v_lshlrev_b32 v5, 4, v5")
    a.i("v_and_b32 v6, 1, v4")
    a.i("v_lshlrev_b32 v6, 3, v6")
    a.i("v_add_u32 v5, v5, v6")
    a.i("v_and_b32 v6, 2, v4")
    a.i("v_lshlrev_b32 v6, 1, v6")
    a.i("v_add_u32 v5, v5, v6")
    a.i(f"v_bfe_u32 v6, v{vLANE}, 1, 2")
    a.i(f"v_add_u32 v{dst}, v5, v6")


def tr_base(a, dst, sbase):
    a.i(f"v_lshrrev_b32 v4, 1, v{vG}")
    a.i("v_lshlrev_b32 v4, 9, v4")
    a.i(f"v_and_b32 v5, 1, v{vG}")
    a.i("v_lshlrev_b32 v5, 7, v5")
    a.i("v_add_u32 v4, v4, v5")
    a.i(f"v_lshrrev_b32 v5, 2, v{vR}")
    a.i("v_lshlrev_b32 v5, 5, v5")
    a.i("v_add_u32 v4, v4, v5")
    a.i(f"v_and_b32 v5, 3, v{vR}")
    a.i("v_lshlrev_b32 v5, 3, v5")
    a.i("v_add_u32 v4, v4, v5")
    a.i(f"v_add_u32 v{dst}, s{sbase}, v4")


def typed(f, t):
    f.t = t
    return f


def T(fs, t):
    return [typed(f, t) for f in fs]


def emit_gaps(mf, qmem, qval):
    qmem, qval = list(qmem), list(qval)
    n = len(mf)
    for g, m in enumerate(mf):
        m()
        left = n - g
        nvec = ns = 0
        took = False
        while qmem:
            t = qmem[0].t
            if g < getattr(qmem[0], "mingap", 0) and left > 2:
                break
            if t == "s":
                if ns >= 3:
                    break
                qmem.pop(0)()
                ns += 1
            elif t == "m":
                if took:
                    break
                qmem.pop(0)()
                took = True
            elif t == "d":
                if nvec:
                    break
                qmem.pop(0)()
                nvec = 2
                break
            else:
                nl = sum(1 for f in qmem if f.t != "s")
                if nvec >= 2 or (nvec >= 1 and nl <= left - 1):
                    break
                qmem.pop(0)()
                nvec += 1
        while qval and nvec < 2:
            qval.pop(0)()
            nvec += 1
    for f in qmem + qval:
        f()


def srd_x(a):
    a.i("s_waitcnt lgkmcnt(0)")
    a.i(f"s_add_u32 s{S_X}, s4, s{sT0}")
    a.i(f"s_addc_u32 s{S_X+1}, s5, 0")
    a.i(f"s_and_b32 s{S_X+1}, s{S_X+1}, 0xffff")
    a.i(f"s_mov_b32 s{S_X+2}, 1152000")
    a.i(f"s_mov_b32 s{S_X+3}, 0x20000")


def srd_rest(a):
    srd(a, S_WO, 8, 41472)
    a.i(f"s_add_u32 s{S_OUT}, s10, s{sT0}")
    a.i(f"s_addc_u32 s{S_OUT+1}, s11, 0")
    a.i(f"s_and_b32 s{S_OUT+1}, s{S_OUT+1}, 0xffff")
    a.i(f"s_mov_b32 s{S_OUT+2}, 1152000")
    a.i(f"s_mov_b32 s{S_OUT+3}, 0x20000")


def SW(fn):
    return typed(fn, "s")


def diag_delay(a, where):
    if OPT.get("delay") != where and OPT.get("delay") != (where,):
        return
    a.i("s_waitcnt lgkmcnt(0)")
    a.lg = []
    a.i("s_memrealtime s[96:97]")
    a.i("s_waitcnt lgkmcnt(0)")
    a.i("s_add_u32 s98, s96, 200")
    a.label(f"L_delay{where}")
    a.i("s_memrealtime s[96:97]")
    a.i("s_waitcnt lgkmcnt(0)")
    a.i("s_sub_u32 s99, s96, s98")
    a.i("s_cmp_lt_i32 s99, 0")
    a.i(f"s_cbranch_scc1 L_delay{where}")


def gen_kernel(a):
    a.label(KNAME)
    stamp(a, "entry", first=True)
    if not OPT.get("nocodepf"):
        a.i("s_getpc_b64 s[16:17]")
        a.label("L_pc0")
        a.i("s_lshr_b32 s18, s2, 3")
        a.i("s_and_b32 s18, s18, 31")
        a.i("s_lshl_b32 s18, s18, 3")
        a.i("v_lshrrev_b32 v4, 6, v0")
        a.i("v_lshlrev_b32 v4, 1, v4")
        a.i("v_and_b32 v5, 1, v0")
        a.i("v_add3_u32 v4, v4, v5, s18")
        a.i("s_mov_b32 s18, (L_code_end-L_pc0-4)/128")
        a.i("v_min_u32 v4, s18, v4")
        a.i("v_lshlrev_b32 v4, 7, v4")
        a.i("v_mov_b32 v7, s17")
        a.i("v_add_co_u32 v6, vcc, s16, v4")
        a.i("s_nop 1")
        a.i("v_addc_co_u32 v7, vcc, 0, v7, vcc")
        a.vmem("global_load_dword v70, v[6:7], off", "pf")
    decode_wg(a, "L_end")
    diag_delay(a, 0)
    a.i(f"s_mov_b32 s{sC73}, 73728")
    a.i(f"v_mul_u32_u24 v4, 3641, v{vLANE}")
    a.i("v_lshrrev_b32 v4, 16, v4")
    a.i("v_mul_u32_u24 v6, 18, v4")
    a.i(f"v_sub_u32 v6, v{vLANE}, v6")
    a.i("v_mul_u32_u24 v4, 1152, v4")
    a.i("v_lshlrev_b32 v6, 4, v6")
    a.i("v_add_u32 v4, v4, v6")
    a.i(f"s_sub_u32 s{sT1}, s{sN0}, 15")
    a.i(f"s_mul_i32 s{sT1}, s{sT1}, 1152")
    a.i(f"s_mul_i32 s{sT2}, s{sPAR}, 288")
    a.i(f"s_add_u32 s{sT1}, s{sT1}, s{sT2}")
    a.i(f"v_add_u32 v147, s{sT1}, v4")
    a.i(f"s_mul_i32 s{sT3}, s{sWAVE}, 9")
    a.i(f"v_lshrrev_b32 v8, 2, v{vLANE}")
    a.i("v_min_u32 v8, 8, v8")
    a.i(f"v_add_u32 v8, s{sT3}, v8")
    a.i("v_lshrrev_b32 v9, 1, v8")
    a.i(f"s_mul_i32 s{sT2}, s{sJ}, 18")
    a.i(f"v_add_u32 v9, s{sT2}, v9")
    a.i("v_mul_u32_u24 v9, 1152, v9")
    a.i("v_and_b32 v8, 1, v8")
    a.i("v_mul_u32_u24 v8, 576, v8")
    a.i("v_add_u32 v9, v9, v8")
    a.i(f"v_and_b32 v8, 3, v{vLANE}")
    a.i("v_mul_u32_u24 v8, 92, v8")
    a.i("v_add_u32 v9, v9, v8")
    a.i(f"v_add_u32 v22, s{sT1}, v9")
    a.i("v_and_b32 v22, -4, v22")
    srd_x(a)
    if not OPT.get("noxpf"):
        a.vmem(f"buffer_load_dword v68, v22, s[{S_X}:{S_X+3}], 0 offen", "pf")
    srd(a, S_W, 6, W_BYTES)
    a.i(f"s_lshl_b32 s{sT2}, s{sI}, 2")
    a.i(f"s_add_u32 s{sT2}, s{sT2}, s{sWAVE}")
    a.i(f"s_mul_i32 s{sT2}, s{sT2}, 3")
    a.i(f"v_min_u32 v4, 2, v{vLANE}")
    a.i(f"v_add_u32 v4, s{sT2}, v4")
    a.i("v_mul_u32_u24 v5, 3641, v4")
    a.i("v_lshrrev_b32 v5, 20, v5")
    a.i("v_mul_u32_u24 v6, 288, v5")
    a.i("v_sub_u32 v6, v4, v6")
    a.i(f"v_mul_u32_u24 v23, {TAPB}, v5")
    a.i("v_cmp_le_u32 vcc, 144, v6")
    a.i("v_lshlrev_b32 v7, 7, v6")
    a.i("v_add_u32 v23, v23, v7")
    a.i(f"v_add_u32 v7, {36864 - 144*128}, v23")
    a.i("v_cndmask_b32 v23, v23, v7, vcc")
    a.i("v_cmp_le_u32 vcc, 8, v5")
    a.i("v_mov_b32 v7, 0x7fffffff")
    a.i("v_mul_u32_u24 v5, 14564, v4")
    a.i(f"v_cndmask_b32 v{vPFA}, v23, v7, vcc")
    a.i("v_lshrrev_b32 v5, 20, v5")
    a.i("v_mul_u32_u24 v6, 72, v5")
    a.i("v_sub_u32 v6, v4, v6")
    a.i("v_lshlrev_b32 v6, 7, v6")
    a.i(f"v_mul_u32_u24 v5, {TAPB}, v5")
    a.i(f"v_add3_u32 v{vPFP}, v5, v6, s{sC73}")
    def w_pf(reg, soff, dst=vXD):
        return [SW(lambda: a.i(f"s_mov_b32 s{sPFO}, {soff}")),
                typed(lambda: a.vmem(f"buffer_load_dword v{dst}, v{reg}, s[{S_W}:{S_W+3}], s{sPFO} offen", "pf"), "d")]
    if not OPT.get("nowpf"):
        for f in w_pf(vPFA, 0, 69) + w_pf(vPFA, 8 * TAPB, 69):
            f()
    srd(a, S_WS, 14, 0x10000000)
    a.i(f"s_lshl_b32 s{sT2}, s{sT}, 8")
    a.i(f"s_add_u32 s{sT2}, s{sT2}, 128")
    a.i(f"s_load_dword s{sTAG}, s[14:15], s{sT2}")
    a.i(f"s_mul_i32 s{sT3}, s{sT}, {H_TEAM}")
    a.i(f"s_lshl_b32 s{sT1}, s{sJ}, 11")
    a.i(f"s_add_u32 s{sT3}, s{sT3}, s{sT1}")
    a.i(f"s_lshl_b32 s{sT1}, s{sKH}, 10")
    a.i(f"s_add_u32 s{sT3}, s{sT3}, s{sT1}")
    a.i(f"s_lshl_b32 s{sT1}, s{sCH}, 9")
    a.i(f"s_add_u32 s{sT3}, s{sT3}, s{sT1}")
    a.i(f"s_add_u32 s{sT3}, s{sT3}, {H_OFF}")
    a.i(f"v_and_b32 v4, 1, v{vG}")
    a.i("v_mul_u32_u24 v5, 18432, v4")
    a.i(f"v_lshrrev_b32 v6, 1, v{vG}")
    a.i("v_lshlrev_b32 v6, 8, v6")
    a.i(f"v_lshlrev_b32 v7, 4, v{vR}")
    a.i("v_add3_u32 v5, v5, v6, v7")
    a.i(f"v_add_u32 v{vHA}, s{sT3}, v5")
    a.i("v_cmp_eq_u32 vcc, 1, v4")
    a.i("v_mov_b32 v6, 0x7fffffff")
    a.i("s_nop 0")
    a.i(f"v_cndmask_b32 v{vHB}, v{vHA}, v6, vcc")

    for d in range(4):
        a.i(f"v_mov_b32 v{vPOI2+d}, -1")
    srd_rest(a)
    w_granule_kk(a, 5)
    a.i(f"v_and_b32 v6, 1, v{vLANE}")
    a.i("v_lshlrev_b32 v6, 4, v6")
    a.i(f"s_lshl_b32 s{sT2}, s{sJ}, 6")
    a.i(f"s_lshl_b32 s{sT1}, s{sCH}, 5")
    a.i(f"s_add_u32 s{sT2}, s{sT2}, s{sT1}")
    a.i(f"v_add_u32 v6, s{sT2}, v6")
    a.i("v_mul_u32_u24 v7, 576, v5")
    a.i("v_add_u32 v7, v7, v6")
    a.i(f"s_mul_i32 s{sT1}, s{sKH}, 36864")
    a.i(f"v_add_u32 v{vWD}, s{sT1}, v7")
    a.i("v_and_b32 v7, 15, v5")
    a.i("v_mul_u32_u24 v7, 576, v7")
    a.i("v_lshrrev_b32 v8, 4, v5")
    a.i(f"v_mul_u32_u24 v8, {2*TAPB}, v8")
    a.i("v_add_u32 v7, v7, v8")
    a.i("v_add_u32 v7, v7, v6")
    a.i(f"s_mul_i32 s{sT1}, s{sKH}, {16*TAPB}")
    a.i(f"s_add_u32 s{sT1}, s{sT1}, {128*576}")
    a.i(f"v_add_u32 v{vWP}, s{sT1}, v7")
    a.i(f"s_mul_i32 s{sRING}, s{sWAVE}, {RSLOTS*1024}")
    a.i(f"s_add_u32 s{sRING}, s{sRING}, {L_RING}")
    for k in range(RSLOTS):
        a.i(f"s_add_u32 s{sSLOT+k}, s{sRING}, {k*1024}")
    a.i(f"s_mov_b32 s{sTAP}, {TAPB}")
    a.i(f"s_mov_b32 s{sTAP3}, {3*TAPB}")
    a.i(f"s_mov_b32 s{sMASK}, 0xffff0000")

    items = []
    for si, st in enumerate(STEPS):
        for it in st.items:
            items.append((si,) + it)
    slot_of = {(si, nm): k % RSLOTS for k, (si, nm, _, _) in enumerate(items)}
    cur_soff = [None]

    def dma_instrs(si):
        out = []
        for nm, so, vreg in STEPS[si].items:
            sl = slot_of[(si, nm)]

            def f_soff(so=so):
                prev = cur_soff[0]
                if prev is not None and so - prev == TAPB:
                    a.i(f"s_add_u32 s{sSOFF}, s{sSOFF}, s{sTAP}")
                elif prev is not None and so - prev == 3 * TAPB:
                    a.i(f"s_add_u32 s{sSOFF}, s{sSOFF}, s{sTAP3}")
                else:
                    a.i(f"s_mov_b32 s{sSOFF}, {so}")
                cur_soff[0] = so
            out.append(lambda sl=sl: a.i(f"s_mov_b32 m0, s{sSLOT+sl}"))
            out.append(f_soff)
            out.append(lambda vreg=vreg, si=si: a.vmem(
                f"buffer_load_dwordx4 v{vreg}, s[{S_W}:{S_W+3}], s{sSOFF} offen lds", ("w", si)))
        return out

    def dma_typed(si):
        return [typed(f, "d" if k % 3 == 2 else "s") for k, f in enumerate(dma_instrs(si))]

    for f in dma_instrs(0):
        f()
    a.i(f"s_mul_i32 s{sT1}, s{sWAVE}, {3*1152}")
    a.i(f"v_add_u32 v{vXD}, s{sT1}, v147")
    a.i(f"v_add_u32 v8, 576, v{vXD}")
    a.i(f"v_add_u32 v9, {156*1152}, v147")
    a.i(f"v_add_u32 v7, {156*1152+576}, v147")
    a.i(f"s_mul_i32 s{sT2}, s{sWAVE}, 864")
    a.i("s_mov_b32 exec_lo, -1")
    a.i("s_mov_b32 exec_hi, 0x3fffff")
    for sel in range(2):
        base = L_X1 if sel else L_X0
        reg = 8 if sel else vXD
        for i in range(14):
            if i < 13:
                a.i(f"s_add_u32 m0, s{sT2}, {base + 3456*i}")
                a.i(f"v_add_u32 v{reg}, 13824, v{reg}" if i else "s_nop 0")
                a.vmem(f"buffer_load_dwordx4 v{reg}, s[{S_X}:{S_X+3}], 0 offen lds", "x")
            else:
                a.i(f"s_mov_b32 m0, {base + 156*288}")
                a.i("s_nop 0")
                a.vmem(f"buffer_load_dwordx4 v{7 if sel else 9}, s[{S_X}:{S_X+3}], 0 offen lds", "x")
    a.i("s_mov_b64 exec, -1")
    for si in (1, 2):
        for f in dma_instrs(si):
            f()
    if OPT.get("pfpro"):
        for so in (16, 24):
            for f in w_pf(vPFA, so * TAPB):
                f()
        for so in (0, 8, 16, 24):
            for f in w_pf(vPFA, so * TAPB + 18432):
                f()
        for f in w_pf(vPFP, 0):
            f()
    a.i(f"s_lshl_b32 s{sT0}, s{sI}, 2")
    a.i(f"s_add_u32 s{sT0}, s{sT0}, s{sWAVE}")
    a.i(f"s_mul_i32 s{sT1}, s{sT0}, 203")
    a.i(f"s_lshr_b32 s{sT1}, s{sT1}, 16")
    a.i(f"s_mul_i32 s{sT1}, s{sT1}, 324")
    a.i(f"s_sub_u32 s{sT0}, s{sT0}, s{sT1}")
    a.i(f"s_lshl_b32 s{sT0}, s{sT0}, 7")
    a.i(f"v_mov_b32 v4, s{sT0}")
    a.vmem(f"buffer_load_dword v{vXD}, v4, s[{S_WO}:{S_WO+3}], 0 offen", "pf2")
    a.i(f"v_mul_u32_u24 v4, 2592, v{vR}")
    a.i(f"v_lshlrev_b32 v5, 4, v{vG}")
    a.i("v_add_u32 v5, v4, v5")
    a.i(f"s_lshl_b32 s{sT0}, s{sKH}, 7")
    a.i(f"v_add_u32 v{vXB['0']}, s{sT0}, v5")
    a.i(f"v_add_u32 v{vXB['1']}, {L_X1}, v{vXB['0']}")
    a.i(f"v_add_u32 v{vXB['s']}, {L_XS}, v{vXB['0']}")
    a.i(f"v_and_b32 v5, 1, v{vG}")
    a.i("v_lshlrev_b32 v5, 4, v5")
    a.i("v_add_u32 v5, v4, v5")
    a.i(f"v_lshrrev_b32 v6, 1, v{vG}")
    a.i("v_mul_u32_u24 v6, 288, v6")
    a.i("v_sub_u32 v5, v5, v6")
    a.i(f"s_mul_i32 s{sT0}, s{sKH}, {8*288}")
    a.i(f"s_sub_u32 s{sT0}, 256, s{sT0}")
    a.i(f"v_add_u32 v{vPB['0']}, s{sT0}, v5")
    a.i(f"v_add_u32 v{vPB['1']}, {L_X1}, v{vPB['0']}")
    a.i(f"v_add_u32 v{vPB['s']}, {L_XS}, v{vPB['0']}")
    tr_base(a, vTR, sRING)
    a.i(f"v_mul_u32_u24 v4, 288, v{vR}")
    a.i(f"v_lshrrev_b32 v5, 1, v{vG}")
    a.i(f"v_mul_u32_u24 v5, {XB}, v5")
    a.i(f"v_and_b32 v6, 1, v{vG}")
    a.i("v_lshlrev_b32 v6, 4, v6")
    a.i("v_add3_u32 v5, v4, v5, v6")
    a.i(f"v_lshlrev_b32 v6, 3, v{vG}")
    a.i("v_add_u32 v6, v4, v6")
    a.i(f"v_add_u32 v6, {L_XS}, v6")
    a.i(f"s_lshl_b32 s{sT0}, s{sKH}, 7")
    a.i(f"s_lshl_b32 s{sT1}, s{sCH}, 5")
    a.i(f"s_add_u32 s{sT0}, s{sT0}, s{sT1}")
    a.i(f"v_add_u32 v{vXA}, s{sT0}, v5")
    a.i(f"v_add_u32 v{vXW}, s{sT0}, v6")
    a.i(f"s_mul_i32 s{sT0}, s{sWAVE}, {16*288}")
    a.i(f"s_add_u32 s{sT0}, s{sT0}, 256")
    a.i(f"v_add_u32 v{vXA2}, s{sT0}, v5")
    a.i(f"v_add_u32 v{vXW2}, s{sT0}, v6")
    a.i(f"s_lshl_b32 s{sT0}, s{sWAVE}, 4")
    a.i(f"s_add_u32 s{sT0}, s{sT0}, 128")
    a.i(f"s_min_u32 s{sT0}, s{sT0}, 143")
    a.i(f"s_mul_i32 s{sT0}, s{sT0}, 288")
    a.i(f"s_add_u32 s{sT0}, s{sT0}, 256")
    a.i(f"v_add_u32 v{vXA3}, s{sT0}, v5")
    a.i(f"v_add_u32 v{vXW3}, s{sT0}, v6")
    a.i(f"v_mul_u32_u24 v4, 288, v{vR}")
    a.i(f"v_lshrrev_b32 v5, 1, v{vG}")
    a.i("v_lshlrev_b32 v5, 4, v5")
    a.i(f"s_lshl_b32 s{sT0}, s{sKH}, 7")
    a.i(f"s_lshl_b32 s{sT1}, s{sCH}, 5")
    a.i(f"s_add_u32 s{sT0}, s{sT0}, s{sT1}")
    a.i(f"s_add_u32 s{sT0}, s{sT0}, {L_XS}")
    a.i(f"v_add3_u32 v4, v4, v5, s{sT0}")
    a.i(f"v_and_b32 v5, 1, v{vG}")
    a.i(f"v_mul_u32_u24 v6, {16*288}, v5")
    a.i(f"v_add_u32 v{vW2}, v4, v6")
    a.i(f"v_mul_u32_u24 v6, {15*288}, v5")
    a.i(f"v_add_u32 v{vW2L}, v4, v6")
    a.i(f"v_lshrrev_b32 v4, 3, v{vR}")
    a.i(f"v_and_b32 v5, 1, v{vG}")
    a.i("v_cmp_eq_u32 vcc, v4, v5")
    a.i(f"v_and_b32 v4, 1, v{vR}")
    a.i("v_lshlrev_b32 v4, 4, v4")
    a.i("v_mov_b32 v5, 0x3f80")
    a.i("v_lshlrev_b32 v4, v4, v5")
    a.i("v_cndmask_b32 v4, 0, v4, vcc")
    a.i(f"v_bfe_u32 v5, v{vR}, 1, 2")
    for d in range(4):
        a.i(f"v_cmp_eq_u32 vcc, {d}, v5")
        a.i("s_nop 1")
        a.i(f"v_cndmask_b32 v{vS+d}, 0, v4, vcc")
    a.i(f"s_lshl_b32 s{sT0}, s{sT}, 8")
    a.i(f"s_lshl_b32 s{sT1}, s{sJ}, 2")
    a.i(f"s_add_u32 s{sT1}, s{sT1}, s{sT0}")
    a.i(f"v_mov_b32 v4, s{sT1}")
    a.i(f"v_or_b32 v5, s{sWAVE}, v{vLANE}")
    a.i("v_cmp_eq_u32 vcc, 0, v5")
    a.i("v_mov_b32 v6, 0x7fffffff")
    a.i(f"v_min_u32 v7, 8, v{vLANE}")
    a.i(f"v_cndmask_b32 v{vFLG}, v6, v4, vcc")
    a.i("v_lshlrev_b32 v7, 2, v7")
    a.i(f"v_add_u32 v{vFLT}, s{sT0}, v7")

    def blocks(seg):
        if seg in ("A", "B"):
            so = 64 if seg == "B" else 0
            return [(vXA, vXW, min(16 * rb, 143) * 288 + so) for rb in range(10)]
        return [(vXA2, vXW2, 0), (vXA2, vXW2, 64 * 288), (vXA3, vXW3, 0)]

    def ad_read(bi, blk):
        ra, _, imm = blk
        return lambda: a.lds(f"ds_read_b128 {vr(vAB[bi % 2])}, v{ra} offset:{imm}", ("ab", bi % 2))

    def ad_mfma(bi):
        def f():
            a.wait_lg_emit(("ab", bi % 2))
            a.i(f"v_mfma_f32_16x16x32_bf16 {vr(vAD[bi % 2])}, {vr(vS)}, {vr(vAB[bi % 2])}, 0")
        return f

    def ad_fin(bi, blk):
        _, wa, imm = blk
        d, c = vAD[bi % 2], vAC[bi % 2]
        return [lambda: a.i(f"v_cvt_pk_bf16_f32 v{c}, v{d}, v{d+1}"),
                lambda: a.i(f"v_cvt_pk_bf16_f32 v{c+1}, v{d+2}, v{d+3}"),
                lambda: a.lds(f"ds_write_b64 v{wa}, v[{c}:{c+1}] offset:{imm}", "xw")]

    xw = XWin()

    def x_read(key):
        def f():
            reg, imm = x_addr(key)
            d = xw.alloc(key)
            a.lds(f"ds_read_b128 {ar(d)}, v{reg} offset:{imm}", ("x", key))
        return f

    def tr_reads(si):
        out = []
        b = si % 3
        for nm, _, _ in STEPS[si].items:
            sl = slot_of[(si, nm)]
            d = (vH0 if nm == "H0" else vH1)[b]
            for h in range(2):
                out.append(lambda d=d, h=h, sl=sl, si=si: a.lds(
                    f"ds_read_b64_tr_b16 v[{d+2*h}:{d+2*h+1}], v{vTR} offset:{sl*1024 + h*256}", ("tr", si)))
        return out

    def hs_ops(si):
        if not STEPS[si].hasQ:
            return []
        return [lambda s=s: a.i(s) for s in hs_valu(vH0[si % 3], vH1[si % 3], vHS[si % 3])]

    def mf_list(si, groups):
        st = STEPS[si]
        out = []
        for grp in groups:
            seq = {"P": "0", "Q": "1", "R": "s"}[grp]
            if grp == "Q" and not st.hasQ:
                continue
            wreg = {"P": vH0[si % 3], "Q": vH1[si % 3], "R": vHS[si % 3] if st.hasQ else vH0[si % 3]}[grp]
            for m in range(9):
                key = (seq, st.seg, m - st.shift)
                acc = ACC[grp] + 4 * m
                c = "0" if si == 0 else vr(acc)
                out.append(lambda key=key, acc=acc, wreg=wreg, c=c: a.i(
                    f"v_mfma_f32_16x16x32_bf16 {vr(acc)}, {vr(wreg)}, {ar(xw.reg(key))}, {c}"))
        return out

    stamp(a, "issued")
    a.wait_vm_emit(("w", 0))
    for f in tr_reads(0):
        f()
    a.wait_vm_emit("x")
    a.i("s_waitcnt lgkmcnt(0)")
    a.lg = []
    for f in dma_instrs(3):
        f()

    a.i("s_barrier")
    stamp(a, "x landed")
    a.i(f"s_mul_i32 s{sTAG}, s{sTAG}, 1664525")
    a.i(f"s_add_u32 s{sTAG}, s{sTAG}, 1013904223")
    loaded = set()

    def new_x(si, seqs):
        out = []
        for k in STEPS[si].xkeys():
            if k not in loaded and k[0] in seqs:
                loaded.add(k)
                out.append(typed(x_read(k), "l"))
        return out

    for f in new_x(0, "01"):
        f()
    a.i(f"v_mov_b32 v{vTAG}, s{sTAG}")

    TB, TD = 104, ACC["R"]
    bl = blocks("A")
    q = []
    for bi, (ra, wa, imm) in enumerate(bl):
        q.append(typed(lambda bi=bi, ra=ra, imm=imm: a.lds(f"ds_read_b128 {vr(TB+4*bi)}, v{ra} offset:{imm}", ("pb", bi)), "l"))
    q = [SW(lambda: a.wait_vm_emit(("w", 1)))] + T(tr_reads(1), "l") + q
    q += new_x(1, "01")
    q.append(SW(lambda: a.wait_vm_emit(("w", 2))))
    q += T(tr_reads(2), "l")
    for bi in range(10):
        def f(bi=bi):
            a.wait_lg_emit(("pb", bi))
            d = TD + 4 * bi if bi < 9 else vAD[0]
            a.i(f"v_mfma_f32_16x16x32_bf16 {vr(d)}, {vr(vS)}, {vr(TB+4*bi)}, 0")
        q.append(typed(f, "m"))
    stamp(a, "step 0")
    a.wait_lg_emit([("x", k) for k in STEPS[0].xkeys()] + [("tr", 0)])
    emit_gaps(mf_list(0, "PQ"), q, hs_ops(0))
    if OPT.get("fb"): stamp(a, "PQ0 done")
    fin = []
    for bi in range(0, 10, 2):
        d = TD + 4 * bi
        d2 = TD + 4 * (bi + 1) if bi + 1 < 9 else vAD[0]
        imm = bl[bi][2]
        wa = vW2 if bi < 8 else vW2L
        fin.append(lambda d=d: a.i(f"v_cvt_pk_bf16_f32 v{d}, v{d}, v{d+1}"))
        fin.append(lambda d=d: a.i(f"v_cvt_pk_bf16_f32 v{d+1}, v{d+2}, v{d+3}"))
        fin.append(lambda d=d, d2=d2: a.i(f"v_cvt_pk_bf16_f32 v{d+2}, v{d2}, v{d2+1}"))
        fin.append(lambda d=d, d2=d2: a.i(f"v_cvt_pk_bf16_f32 v{d+3}, v{d2+2}, v{d2+3}"))
        fin.append(lambda: a.i("s_nop 1"))
        fin.append(lambda d=d: a.i(f"v_permlane16_swap_b32 v{d}, v{d+2}"))
        fin.append(lambda d=d: a.i(f"v_permlane16_swap_b32 v{d+1}, v{d+3}"))
        fin.append(lambda d=d, wa=wa, imm=imm: a.lds(f"ds_write_b128 v{wa}, {vr(d)} offset:{imm}", "xw"))
    a.wait_lg_emit([("x", k) for k in STEPS[1].xkeys()] + [("tr", 1)])
    q = dma_typed(4) + ([] if OPT.get("nowpf") or OPT.get("pfpro") else w_pf(vPFA, 16 * TAPB)) + new_x(2, "01")
    emit_gaps(mf_list(1, "PQ"), q, fin)
    if OPT.get("fb"): stamp(a, "PQ1 done")
    a.lg_all()
    a.i("s_barrier")
    if OPT.get("fb"): stamp(a, "bar")
    q = new_x(0, "s") + new_x(1, "s") + new_x(2, "s")
    q += dma_typed(5)
    q.append(SW(lambda: a.wait_vm_emit(("w", 3))))
    q += T(tr_reads(3), "l")
    h12 = hs_ops(1) + hs_ops(2)
    emit_gaps(mf_list(2, "PQ"), q, h12[:36])
    if OPT.get("fb"): stamp(a, "PQ2 done")
    q = new_x(3, "01s")
    q.append(SW(lambda: a.wait_vm_emit(("w", 4))))
    q += T(tr_reads(4), "l")
    q.append(SW(lambda: a.wait_lg_emit(("tr", 3))))
    q += dma_typed(6)
    a.wait_lg_emit([("x", k) for s_ in range(3) for k in STEPS[s_].xkeys() if k[0] == "s"])
    emit_gaps(mf_list(0, "R") + mf_list(1, "R") + mf_list(2, "R"), q, h12[36:] + hs_ops(3))
    for s_ in range(3):
        xw.release_after(s_)
    if OPT.get("fb"): stamp(a, "R012 done")

    extra = {si: [] for si in range(NST)}
    for s0, nxt in ((0, 16), (16, 32)):
        ks = STEPS[nxt].xkeys()
        raw = [k for k in ks if k[0] != "s"]
        sm = [k for k in ks if k[0] == "s"]
        for n, k in enumerate(raw):
            extra[s0 + 5 + (n * 10) // len(raw)].append(k)
        for n, k in enumerate(sm):
            extra[s0 + 13 + n // 3].append(k)
    all_extra = {e for ee in extra.values() for e in ee}
    barrier_at = {13, 29}
    adjobs = {}
    for seg, first_step in (("B", 3), ("Pr", 18)):
        for bi, blk in enumerate(blocks(seg)):
            adjobs.setdefault(first_step + (bi * 9) // 10, []).append((bi, blk))

    POI_AT = list(OPT.get("poi", (6, 10, 14, 18, 22)))
    FLAG_AT = OPT.get("flagat", (29,))[0]
    FLAGLD_AT = OPT.get("flagld", (33,))[0]
    assert FLAG_AT in barrier_at and max(POI_AT) + 3 <= FLAG_AT
    PF_AT = {4: (vPFA, 24 * TAPB), 8: (vPFA, 18432), 12: (vPFA, 8 * TAPB + 18432), 16: (vPFA, 16 * TAPB + 18432),
             20: (vPFA, 24 * TAPB + 18432), 24: (vPFP, 0)}
    for d in range(4):
        a.i(f"v_mov_b32 v{vPOI+d}, -1")

    def wo_dma():
        out = []
        for k in range(11):
            if k % 4 == 0:
                out.append(SW(lambda k=k: a.i(f"s_add_u32 m0, s{sT3}, {k*1024}")))
                out.append(SW(lambda k=k: a.i(f"s_add_u32 s{sT2}, s{sT1}, {k*1024}")))
            out.append(typed(lambda k=k: a.vmem(
                f"buffer_load_dwordx4 v{vWOA}, s[{S_WO}:{S_WO+3}], s{sT2} offen offset:{(k % 4)*1024} lds", "wo"), "d"))
        return out

    for si in range(3, NST):
        st = STEPS[si]
        if si == 10:
            diag_delay(a, 3)
        if si in OPT.get("stamp_steps", (4, 16, 32)):
            stamp(a, f"step {si}")
        mem = []
        if si in barrier_at:
            b1 = SW(lambda: a.lg_all()); b1.isbar = True
            b2 = SW(lambda: a.i("s_barrier")); b2.isbar = True
            mem += [b1, b2]
        prev = adjobs.get(si - 1, [])
        cur = adjobs.get(si, [])
        if si + 4 < NST and not OPT.get("dmalate"):
            mem += dma_typed(si + 4)
        mem += [typed(ad_mfma(bi), "m") for bi, blk in prev]
        if si + 2 < NST:
            mem.append(SW(lambda n=si + 2: a.wait_vm_emit(("w", n))))
            if not OPT.get("notr"):
                mem += T(tr_reads(si + 2), "l")
        if si + 1 < NST:
            for k in STEPS[si + 1].xkeys():
                if k not in loaded and k not in all_extra:
                    loaded.add(k)
                    mem.append(typed(x_read(k), "l"))
        for k in extra[si]:
            if k not in loaded:
                loaded.add(k)
                mem.append(typed(x_read(k), "l"))
        if si + 4 < NST and OPT.get("dmalate"):
            mem += dma_typed(si + 4)
        if si in PF_AT and not OPT.get("nowpf") and not OPT.get("pfpro"):
            mem += w_pf(*PF_AT[si])
        if si in POI_AT and not OPT.get("nopoison"):
            m = 2 * POI_AT.index(si)
            mem.append(SW(lambda m=m: a.i(f"s_mov_b32 s{sT1}, {m*18432}")))
            mem.append(typed(lambda m=m: a.vmem(
                f"buffer_store_dwordx4 v[{vPOI}:{vPOI+3}], v{vHB if m == 8 else vHA}, s[{S_WS}:{S_WS+3}], s{sT1} offen sc1", "poison"), "d"))
        if si == FLAG_AT:
            mem.append(typed(lambda: a.vmem(
                f"buffer_store_dword v{vTAG}, v{vFLG}, s[{S_WS}:{S_WS+3}], 0 offen sc1", "flagst"), "d"))
        if si == FLAGLD_AT:
            mem.append(typed(lambda: a.vmem(
                f"buffer_load_dword v{vFLV}, v{vFLT}, s[{S_WS}:{S_WS+3}], 0 offen sc1", "flagld"), "d"))
        hv = hs_ops(si + 1) if si + 1 < NST else []
        adv, writes = [], []
        for bi, blk in prev:
            c1, c2, w = ad_fin(bi, blk)
            adv += [c1, c2]
            writes.append(w)
        mem += [typed(ad_read(bi, blk), "l") for bi, blk in cur]
        if si == NST - 2:
            a.i(f"s_mul_i32 s{sT1}, s{sWAVE}, 11264")
            a.i(f"s_add_u32 s{sT3}, s{sT1}, {L_WO}")
            a.i(f"v_lshlrev_b32 v{vWOA}, 4, v{vLANE}")
        if si == NST - 1:
            mem = [SW(lambda: a.i("s_barrier"))] + wo_dma()
        val = hv[:10] + adv + writes + hv[10:]
        if si == 27:
            tsu = tail_setup_ops(a)
        if si >= 27:
            take = {27: 8, 28: 8, 29: 6, 30: 44, 31: 0, 32: 8, 33: 8, 34: 8}.get(si, len(tsu))
            val = val + tsu[:take]
            tsu = tsu[take:]
        if OPT.get("noval"): val = adv + writes
        if OPT.get("nodma"): mem = [f for f in mem if f.t != "d"]
        if OPT.get("nolds"): keep_x = True
        if OPT.get("nobar"): mem = [f for f in mem if not getattr(f, "isbar", False)]
        need = [("x", k) for k in st.xkeys()] + [("tr", si), ("tr", si + 1)]
        a.wait_lg_emit(need)
        if si == NST - 1:
            a.lg_all()
        emit_gaps(mf_list(si, "PQR"), mem, val)
        xw.release_after(si)

    stamp(a, "loop end")
    diag_delay(a, 1)
    gen_tail(a)
    diag_delay(a, 2)
    stamp(a, "done")
    stamp_flush(a)
    a.label("L_end")
    a.i("s_endpgm")
    a.label("L_code_end")


tF, tG, tFQ, tGQ, tWO, tWO4, tZW, tZQ, tZR, tZR4, tOUT, tOUT4, tSLO, tSLP, tSEED = range(128, 143)
tCF, tCG, tC1 = 104, 106, 108
sU0, sU1, sU2, sU3 = 4, 5, 6, 7
sC60 = 8
ZP = 4608


def tail_setup_ops(a):
    L = []

    def I(x):
        L.append(lambda x=x: a.i(x))
    I(f"s_mul_i32 s{sU0}, s{sT}, {H_TEAM}")
    I(f"s_mul_i32 s{sU1}, s{sJ}, 18432")
    I(f"s_add_u32 s{sU0}, s{sU0}, s{sU1}")
    I(f"s_lshl_b32 s{sU1}, s{sKH}, 10")
    I(f"s_add_u32 s{sU0}, s{sU0}, s{sU1}")
    I(f"s_add_u32 s{sU0}, s{sU0}, {H_OFF}")
    I(f"s_lshl_b32 s{sU1}, s{sCH}, 12")
    I(f"s_add_u32 s{sU1}, s{sU1}, s{sU0}")
    I(f"v_lshlrev_b32 v4, 8, v{vG}")
    I(f"v_lshlrev_b32 v5, 4, v{vR}")
    I(f"v_add3_u32 v{tF}, v4, v5, s{sU1}")
    I(f"v_lshrrev_b32 v6, 1, v{vG}")
    I("v_lshlrev_b32 v6, 10, v6")
    I(f"v_add_u32 v6, v6, v{tF}")
    I(f"v_add_u32 v{tG}, {4*2048+512}, v6")
    I(f"s_lshl_b32 s{sU1}, s{sCH}, 8")
    I(f"s_add_u32 s{sU1}, s{sU1}, s{sU0}")
    I(f"v_lshlrev_b32 v6, 2, v{vG}")
    I(f"v_add3_u32 v6, v5, v6, s{sU1}")
    I(f"v_add_u32 v{tFQ}, {4*2048}, v6")
    I(f"v_add_u32 v{tGQ}, {8*2048+512}, v6")
    I(f"v_lshlrev_b32 v4, 3, v{vG}")
    I(f"v_lshrrev_b32 v5, 2, v{vR}")
    I("v_add_u32 v4, v4, v5")
    I("v_mul_u32_u24 v4, 288, v4")
    I(f"v_and_b32 v6, 3, v{vR}")
    I("v_lshlrev_b32 v6, 3, v6")
    I(f"s_lshl_b32 s{sU0}, s{sCH}, 7")
    I(f"s_add_u32 s{sU0}, s{sU0}, {L_WO}")
    I(f"v_add3_u32 v{tWO}, v4, v6, s{sU0}")
    I(f"v_lshlrev_b32 v4, 2, v{vG}")
    I("v_add_u32 v4, v4, v5")
    I("v_mul_u32_u24 v4, 288, v4")
    I(f"s_add_u32 s{sU0}, s{sU0}, {128*288}")
    I(f"v_add3_u32 v{tWO4}, v4, v6, s{sU0}")
    I(f"s_mul_i32 s{sU0}, s{sKH}, {ZP}")
    I(f"s_add_u32 s{sU0}, s{sU0}, {L_Z}")
    I(f"s_lshl_b32 s{sU1}, s{sCH}, 11")
    I(f"s_add_u32 s{sU1}, s{sU1}, s{sU0}")
    I(f"v_lshlrev_b32 v4, 4, v{vLANE}")
    I(f"v_add_u32 v{tZW}, s{sU1}, v4")
    I(f"v_add_u32 v{tZR}, s{sU0}, v4")
    I(f"s_mul_i32 s{sU2}, s{sWAVE}, 9216")
    I(f"v_add_u32 v{tSLO}, s{sU2}, v4")
    I(f"s_xor_b32 s{sU2}, s{sWAVE}, 2")
    I(f"s_mul_i32 s{sU2}, s{sU2}, 9216")
    I(f"v_add_u32 v{tSLP}, s{sU2}, v4")
    I(f"v_lshrrev_b32 v6, 1, v{vG}")
    I(f"s_lshl_b32 s{sU1}, s{sCH}, 1")
    I(f"v_add_u32 v6, s{sU1}, v6")
    I("v_lshlrev_b32 v6, 7, v6")
    I(f"v_lshlrev_b32 v7, 3, v{vR}")
    I("v_add_u32 v6, v6, v7")
    I(f"v_and_b32 v7, 1, v{vG}")
    I("v_lshlrev_b32 v7, 2, v7")
    I(f"s_add_u32 s{sU1}, s{sU0}, 4096")
    I(f"v_add3_u32 v{tZQ}, v6, v7, s{sU1}")
    I(f"v_lshlrev_b32 v6, 3, v{vLANE}")
    I(f"v_add_u32 v{tZR4}, s{sU1}, v6")
    I(f"s_add_u32 s{sU0}, s{sN0}, s{sJ}")
    I(f"v_mul_u32_u24 v4, 9, v{vR}")
    I(f"v_add_u32 v4, s{sU0}, v4")
    I(f"s_mul_i32 s{sU1}, s{sTAU}, 143")
    I(f"v_cmp_gt_i32 s[{sU2}:{sU3}], s{sU1}, v4")
    I("v_lshlrev_b32 v5, 2, v4")
    I(f"s_lshl_b32 s{sU1}, s{sKH}, 1")
    I(f"s_add_u32 s{sU1}, s{sU1}, s{sPAR}")
    I(f"v_add_u32 v5, s{sU1}, v5")
    I("v_mul_u32_u24 v5, 288, v5")
    I(f"v_and_b32 v6, 1, v{vG}")
    I("v_lshlrev_b32 v6, 5, v6")
    I(f"v_lshrrev_b32 v7, 1, v{vG}")
    I("v_lshlrev_b32 v7, 4, v7")
    I("v_add3_u32 v5, v5, v6, v7")
    I(f"s_lshl_b32 s{sU1}, s{sCH}, 7")
    I(f"v_add_u32 v5, s{sU1}, v5")
    I("v_mov_b32 v6, 0x7fffffff")
    I(f"v_cndmask_b32 v{tOUT}, v5, v6, s[{sU2}:{sU3}]")
    I(f"v_and_b32 v7, 1, v{vG}")
    I("v_cmp_eq_u32 vcc, 1, v7")
    I(f"v_mov_b32 v{tC1}, 1.0")
    I(f"v_mov_b32 v{tC1+1}, 1.0")
    I(f"v_cndmask_b32 v{tOUT4}, v{tOUT}, v6, vcc")
    I(f"s_lshl_b32 s{sU0}, s{sT}, 8")
    I(f"s_add_u32 s{sU0}, s{sU0}, 128")
    I(f"v_mov_b32 v4, s{sU0}")
    I(f"v_or_b32 v5, s{sWAVE}, v{vLANE}")
    I(f"v_or_b32 v5, s{sJ}, v5")
    I("v_cmp_eq_u32 vcc, 0, v5")
    I(f"v_mov_b32 v{tCF}, 0xc038aa3b")
    I(f"v_mov_b32 v{tCF+1}, 0xc038aa3b")
    I(f"v_cndmask_b32 v{tSEED}, v6, v4, vcc")
    I(f"v_mov_b32 v{tCG}, 0xbfb8aa3b")
    I(f"v_mov_b32 v{tCG+1}, 0xbfb8aa3b")
    I(f"s_mov_b32 s{sC60}, 0x42700000")
    return L


def gen_tail(a):
    P, Q, R = ACC["P"], ACC["Q"], ACC["R"]
    S = 24
    HP = 60

    def pk(d, x, y, neg=False):
        a.i(f"v_pk_add_f32 v[{d}:{d+1}], v[{x}:{x+1}], v[{y}:{y+1}]" + (" neg_lo:[0,1] neg_hi:[0,1]" if neg else ""))

    def y0(dst):
        for d in range(4):
            if dst != P:
                a.i(f"v_mov_b32 v{dst+d}, v{P+d}")
        for m in range(1, 9):
            for d in (0, 2):
                pk(dst + 4 * m + d, P + 4 * m + d, Q + 4 * m - 4 + d)
        for d in range(4):
            a.i(f"v_add_f32_dpp v{dst+d}, v{Q+32+d}, v{P+d} row_shr:1 row_mask:0xf bank_mask:0xf")

    def y1():
        for m in range(9):
            for d in (0, 2):
                pk(R + 4 * m + d, R + 4 * m + d, P + 4 * m + d, True)
            for d in (0, 2):
                pk(R + 4 * m + d, R + 4 * m + d, Q + 4 * m + d, True)

    a.wait_vm_emit("flagld")
    a.i(f"v_cmp_ne_u32 vcc, v{vFLV}, v{vTAG}")
    a.i("s_nop 4")
    a.i("s_cbranch_vccz L_flagok")
    a.i("s_mov_b32 s63, 0")
    a.label("L_flagpoll")
    a.i(f"buffer_load_dword v{vFLV}, v{vFLT}, s[{S_WS}:{S_WS+3}], 0 offen sc1")
    a.i("s_add_u32 s63, s63, 1")
    a.i("s_waitcnt vmcnt(0)")
    a.i(f"v_cmp_ne_u32 vcc, v{vFLV}, v{vTAG}")
    a.i("s_sleep 1")
    a.i("s_nop 3")
    a.i("s_cbranch_vccz L_flagok")
    a.i("s_cmp_lt_u32 s63, 0x40000")
    a.i("s_cbranch_scc1 L_flagpoll")
    a.label("L_flagok")
    a.i(f"s_cmp_eq_u32 s{sKH}, 0")
    a.i("s_cbranch_scc0 L_red1")
    vm_before = list(a.vm)
    for kh in range(2):
        a.vm = list(vm_before)
        if kh == 0:
            y1()
            send, keep = R, P
        else:
            a.label("L_red1")
            y0(S)
            send, keep = S, R
        for m in range(9):
            a.i(f"ds_write_b128 v{tSLO}, {vr(send+4*m)} offset:{L_SLAB + 1024*m}")
        if kh == 0:
            y0(P)
        else:
            y1()
        a.wait_vm_emit("wo")
        a.i("s_waitcnt lgkmcnt(0)")
        a.i("s_barrier")
        for m in range(9):
            a.i(f"ds_read_b128 {vr(Q+4*m)}, v{tSLP} offset:{L_SLAB + 1024*m}")
        for m in range(9):
            a.i(f"s_waitcnt lgkmcnt({8-m})")
            pk(P + 4 * m, keep + 4 * m, Q + 4 * m)
            pk(P + 4 * m + 2, keep + 4 * m + 2, Q + 4 * m + 2)
            a.i(f"v_cvt_pk_bf16_f32 v{HP+2*m}, v{P+4*m}, v{P+4*m+1}")
            a.i(f"v_cvt_pk_bf16_f32 v{HP+2*m+1}, v{P+4*m+2}, v{P+4*m+3}")
            if m % 2 == 1:
                r0 = HP + 2 * (m - 1)
                a.i(f"s_mov_b32 s{sT1}, {(m-1)*18432}")
                a.i("s_nop 0")
                a.i(f"v_permlane16_swap_b32 v{r0}, v{r0+2}")
                a.i(f"v_permlane16_swap_b32 v{r0+1}, v{r0+3}")
                a.vmem(f"buffer_store_dwordx4 {vr(r0)}, v{vHA}, s[{S_WS}:{S_WS+3}], s{sT1} offen sc1", "hs")
        if kh == 0:
            a.i("s_branch L_red2")
    a.label("L_red2")
    r0 = HP + 16
    a.i(f"v_mov_b32 v{r0+2}, 0")
    a.i(f"v_mov_b32 v{r0+3}, 0")
    a.i(f"s_mov_b32 s{sT1}, {8*18432}")
    a.i("s_nop 0")
    a.i(f"v_permlane16_swap_b32 v{r0}, v{r0+2}")
    a.i(f"v_permlane16_swap_b32 v{r0+1}, v{r0+3}")
    a.vmem(f"buffer_store_dwordx4 {vr(r0)}, v{vHB}, s[{S_WS}:{S_WS+3}], s{sT1} offen sc1", "hs")
    stamp(a, "h stores issued")
    a.vmem(f"buffer_store_dword v{vTAG}, v{tSEED}, s[{S_WS}:{S_WS+3}], 0 offen sc1", "seed")
    F = (80, 88)
    Gr = (84, 92)
    FQ, GQ = 96, 97

    def poll_loads():
        for s in range(2):
            a.i(f"buffer_load_dwordx4 {vr(F[s])}, v{tF}, s[{S_WS}:{S_WS+3}], 0 offen offset:{s*2048} sc1")
            a.i(f"buffer_load_dwordx4 {vr(Gr[s])}, v{tG}, s[{S_WS}:{S_WS+3}], 0 offen offset:{s*2048} sc1")
        a.i(f"buffer_load_dword v{FQ}, v{tFQ}, s[{S_WS}:{S_WS+3}], 0 offen sc1")
        a.i(f"buffer_load_dword v{GQ}, v{tGQ}, s[{S_WS}:{S_WS+3}], 0 offen sc1")

    def wo_reads(ts):
        for t in ts:
            for ks in range(4):
                for h in range(2):
                    d = 18 * t + 4 * ks + 2 * h
                    a.i(f"ds_read_b64_tr_b16 a[{d}:{d+1}], v{tWO} offset:{ks*9216 + h*1152 + t*32}")
            d = 18 * t + 16
            a.i(f"ds_read_b64_tr_b16 a[{d}:{d+1}], v{tWO4} offset:{t*32}")
    npre = OPT.get("wopre", (5,))[0]
    wo_reads(range(npre))
    if not OPT.get("nopollack"):
        a.i("s_waitcnt vmcnt(0)")
    for _ in range(OPT.get("polldelay", (0,))[0]):
        a.i("s_sleep 4")
    if OPT.get("xst"): stamp(a, "tr issued")
    a.i("s_mov_b32 s63, 0")
    poll_loads()
    wo_reads(range(npre, 5))
    a.i("s_branch L_hpollw")
    a.label("L_hpoll")
    poll_loads()
    a.label("L_hpollw")
    a.i("s_add_u32 s63, s63, 1")
    a.i("s_waitcnt vmcnt(0)")
    a.i("v_max3_u32 v40, v80, v81, v82")
    a.i("v_max3_u32 v41, v83, v84, v85")
    a.i("v_max3_u32 v42, v86, v87, v88")
    a.i("v_max3_u32 v43, v89, v90, v91")
    a.i("v_max3_u32 v44, v92, v93, v94")
    a.i("v_max3_u32 v45, v95, v96, v97")
    a.i("v_max3_u32 v40, v40, v41, v42")
    a.i("v_max3_u32 v43, v43, v44, v45")
    a.i("v_max_u32 v40, v40, v43")
    a.i("v_cmp_eq_u32 vcc, -1, v40")
    a.i("s_cmp_lt_u32 s63, 0x40000")
    a.i("s_cselect_b64 s[96:97], -1, 0")
    a.i("s_nop 2")
    a.i("s_and_b64 vcc, vcc, s[96:97]")
    a.i("s_cbranch_vccnz L_hpoll")
    a.vm = []
    stamp(a, "h loaded")
    if OPT["stamps"]:
        a.i(f"s_mov_b32 s{S_ST+31}, s63")
    Z = 48

    def gate_ops(fregs, gregs, zdst, A, B, D):
        nd = len(fregs)
        L = []
        for d in range(nd):
            L.append(f"v_lshlrev_b32 v{A+2*d}, 16, v{fregs[d]}")
            L.append(f"v_and_b32 v{A+2*d+1}, s{sMASK}, v{fregs[d]}")
            L.append(f"v_lshlrev_b32 v{B+2*d}, 16, v{gregs[d]}")
            L.append(f"v_and_b32 v{B+2*d+1}, s{sMASK}, v{gregs[d]}")
        for d in range(nd):
            L.append(f"v_pk_mul_f32 v[{A+2*d}:{A+2*d+1}], v[{A+2*d}:{A+2*d+1}], v[{tCF}:{tCF+1}]")
        for d in range(nd):
            L.append(f"v_pk_mul_f32 v[{B+2*d}:{B+2*d+1}], v[{B+2*d}:{B+2*d+1}], v[{tCG}:{tCG+1}]")
        for e in range(2 * nd):
            L.append(f"v_min_f32 v{A+e}, s{sC60}, v{A+e}")
        for e in range(2 * nd):
            L.append(f"v_exp_f32 v{B+e}, v{B+e}")
        for e in range(2 * nd):
            L.append(f"v_exp_f32 v{A+e}, v{A+e}")
        L.append("s_nop 0")
        for d in range(nd):
            L.append(f"v_pk_add_f32 v[{D+2*d}:{D+2*d+1}], v[{A+2*d}:{A+2*d+1}], v[{tC1}:{tC1+1}]")
        for d in range(nd):
            L.append(f"v_pk_fma_f32 v[{D+2*d}:{D+2*d+1}], v[{D+2*d}:{D+2*d+1}], v[{B+2*d}:{B+2*d+1}], v[{D+2*d}:{D+2*d+1}]")
        for e in range(2 * nd):
            L.append(f"v_rcp_f32 v{D+e}, v{D+e}")
        for d in range(nd):
            L.append(f"v_pk_add_f32 v[{A+2*d}:{A+2*d+1}], v[{tC1}:{tC1+1}], v[{A+2*d}:{A+2*d+1}] neg_lo:[0,1] neg_hi:[0,1]")
        L.append("s_nop 0")
        for d in range(nd):
            L.append(f"v_pk_mul_f32 v[{A+2*d}:{A+2*d+1}], v[{A+2*d}:{A+2*d+1}], v[{D+2*d}:{D+2*d+1}]")
        for d in range(nd):
            L.append(f"v_cvt_pk_bf16_f32 v{zdst+d}, v{A+2*d}, v{A+2*d+1}")
        return L

    for s in range(2):
        for x in gate_ops([F[s] + d for d in range(4)], [Gr[s] + d for d in range(4)], Z + 4 * s, 24, 32, 40):
            a.i(x)
        a.i(f"ds_write_b128 v{tZW}, {vr(Z+4*s)} offset:{1024*s}")
    for x in gate_ops([FQ], [GQ], Z + 8, 24, 32, 40):
        a.i(x)
    a.i(f"ds_write_b32 v{tZQ}, v{Z+8}")
    a.lg_all()
    a.i("s_barrier")
    stamp(a, "gated")
    ZF = 60
    for ks in range(4):
        a.i(f"ds_read_b128 {vr(ZF+4*ks)}, v{tZR} offset:{1024*ks}")
    a.i(f"ds_read_b64 v[{ZF+16}:{ZF+17}], v{tZR4}")
    O, PK = 24, 44
    fl = OPT.get("outflag", "")
    a.i("s_waitcnt lgkmcnt(0)")

    def tile(t):
        for ks in range(4):
            c = "0" if ks == 0 else vr(O + 4 * t)
            a.i(f"v_mfma_f32_16x16x32_bf16 {vr(O+4*t)}, {ar(18*t+4*ks)}, {vr(ZF+4*ks)}, {c}")

    def tile_end(t):
        a.i(f"v_mfma_f32_16x16x16_bf16 {vr(O+4*t)}, a[{18*t+16}:{18*t+17}], v[{ZF+16}:{ZF+17}], {vr(O+4*t)}")

    def pack(t):
        a.i(f"v_cvt_pk_bf16_f32 v{PK+2*t}, v{O+4*t}, v{O+4*t+1}")
        a.i(f"v_cvt_pk_bf16_f32 v{PK+2*t+1}, v{O+4*t+2}, v{O+4*t+3}")

    def store(t, addr):
        r0 = PK + 2 * t
        a.i("s_nop 1")
        a.i(f"v_permlane16_swap_b32 v{r0}, v{r0+2}")
        a.i(f"v_permlane16_swap_b32 v{r0+1}, v{r0+3}")
        a.i(f"buffer_store_dwordx4 {vr(r0)}, v{addr}, s[{S_OUT}:{S_OUT+3}], 0 offen offset:{32*t}{fl}")
    a.i(f"v_mov_b32 v{PK+10}, 0")
    a.i(f"v_mov_b32 v{PK+11}, 0")
    tile(0); tile(1); tile(2)
    tile_end(0); tile(3); tile_end(1); tile(4); tile_end(2); tile_end(3)
    pack(0); pack(1)
    tile_end(4)
    store(0, tOUT)
    pack(2); pack(3)
    store(2, tOUT)
    pack(4)
    store(4, tOUT4)
    if OPT["stamps"]:
        a.i("s_waitcnt vmcnt(0)")


def build():
    a = Asm()
    a.raw(f"; @launch grid=(256,1,1) block=(256,1,1) lds={LDS_MAIN}")
    a.raw('.amdgcn_target "amdgcn-amd-amdhsa--gfx950"\n.text')
    a.raw(f".globl {KNAME}\n.p2align 8\n.type {KNAME},@function")
    gen_kernel(a)
    a.raw('.section .rodata,"a"')
    a.raw(kd(KNAME, 512, 256))
    return a.text()


if __name__ == "__main__":
    out = sys.argv[1] if len(sys.argv) > 1 else "m4.s"
    for k in sys.argv[2:]:
        if k.startswith("outflag="):
            OPT["outflag"] = " " + k.split("=")[1].replace("+", " ")
        elif "=" in k:
            kk, vv = k.split("=")
            OPT[kk] = tuple(int(x) for x in vv.split(","))
        else:
            OPT[k] = True
    open(out, "w").write(build())
    print("wrote", out)
```
